```python
import torch

def _softmax(x, axis=-1):
    return torch.softmax(x, dim=axis)
def _gelu(x):
    return torch.nn.functional.gelu(x, approximate="tanh")
def _silu(x):
    return torch.nn.functional.silu(x)
def _sigmoid(x):
    return torch.sigmoid(x)
def _layernorm(x, axis=-1, eps=1e-5):
    m = x.mean(dim=axis, keepdim=True)
    v = x.var(dim=axis, keepdim=True, unbiased=False)
    return (x - m) / torch.sqrt(v + eps)
def _scatter_add(tgt, idx, src, axis=0):
    return tgt.clone().index_add_(axis, idx, src)
def _segment_sum(src, seg, n):
    out = torch.zeros((n,) + src.shape[1:], dtype=src.dtype)
    return out.index_add_(0, seg, src)
def _pad(x, pw):
    flat = tuple(v for pair in reversed(pw) for v in pair)
    return torch.nn.functional.pad(x, flat)

kernel_name = 'recurrent_scan__mha_block_cached__dense_activation_relu__decode'

def setup_inputs():

    _w = (lambda a: (lambda t: t.to(torch.bfloat16) if t.is_floating_point() else t)(torch.as_tensor(a)))
    def _A_setup():
        B, Sq, D = 4, 1, 640
        H, Sk, Dh = 32, 4096, 192
        return {
            "x": _w((lambda *s: torch.randn(*s, dtype=torch.bfloat16) * 0.05)(B, Sq, D)),
            "k_cache": _w((lambda *s: torch.randn(*s, dtype=torch.bfloat16) * 1.6)(B, H, Sk, Dh)),
            "v_cache": _w((lambda *s: torch.randn(*s, dtype=torch.bfloat16) * 0.2)(B, H, Sk, Dh)),
            "wq": _w((lambda *s: torch.randn(*s, dtype=torch.bfloat16) * 1.6)(D, H * Dh) * (D ** -0.5)),
            "wo": _w((lambda *s: torch.randn(*s, dtype=torch.bfloat16) * 0.2)(H * Dh, D) * ((H * Dh) ** -0.5)),
        }
    _A_in = _A_setup()

    def _B_setup():
        B, S, D, Dff = 4, 1, 640, 1536
        return {
            "x": _w((lambda *s: torch.randn(*s, dtype=torch.bfloat16) * 0.05)(B, S, D)),
            "w1": _w((lambda *s: torch.randn(*s, dtype=torch.bfloat16) * 0.1)(D, Dff)),
            "w2": _w((lambda *s: torch.randn(*s, dtype=torch.bfloat16) * 0.1)(Dff, D)),
        }
    _B_in = _B_setup()

    return {
        "A_x": _A_in["x"],
        "A_k_cache": _A_in["k_cache"],
        "A_v_cache": _A_in["v_cache"],
        "A_wq": _A_in["wq"],
        "A_wo": _A_in["wo"],
        "B_x": _B_in["x"],
        "B_w1": _B_in["w1"],
        "B_w2": _B_in["w2"],
    }

def reference(A_x, A_k_cache, A_v_cache, A_wq, A_wo, B_x, B_w1, B_w2):
    def _A_ref(x, k_cache, v_cache, wq, wo):
        B, Sq, D = x.shape
        H, Dh = 32, 192
        q = (lambda x, *d: x.permute(*d))((x @ wq).reshape(B, Sq, H, Dh), 0, 2, 1, 3)
        scores = torch.einsum("bhqd,bhkd->bhqk", q, k_cache) * (Dh ** -0.5)
        p = _softmax(scores, axis=-1)
        o = torch.einsum("bhqk,bhkd->bhqd", p, v_cache)
        return (lambda x, *d: x.permute(*d))(o, 0, 2, 1, 3).reshape(B, Sq, H * Dh) @ wo

    def _B_ref(x, w1, w2):
        h = torch.einsum("bsd,df->bsf", x, w1)
        zero = torch.zeros_like(h)
        h = torch.maximum(h, zero)
        return torch.einsum("bsf,fd->bsd", h, w2)

    x = A_x
    xn = _layernorm(x, axis=-1)
    s = _A_ref(xn, A_k_cache, A_v_cache, A_wq, A_wo)
    g = _silu(_B_ref(xn, B_w1, B_w2))
    return x + s * g
```

```python
import sys, struct
NAME = "recurrent_scan__mha_block_cached__dense_activation_relu__decode"
def f2u(x): return struct.unpack("<I", struct.pack("<f", x))[0]

WS_E, WS_QP, WS_YP, WS_TK, WS_LB, WS_SP, WS_OP, WS_END = 0, 0x1000, 0x40000, 0x60000, 0x80000, 0xD0000, 0x120000, 0x1E0100
WS_GB = 0x90000
WS_ML = 0x58000
STAMP_OFF = 700 << 20
L_XN = 0
L_H = 5248
L_Q = 6912
L_FLAG = 8576
L_SC = 8704
L_T2 = 16896
L_PART = L_T2
L_A = L_T2 + 12288
L_TW = 57856
L_W2 = 88576
LDS_BYTES = 122880
BSTR = 32 * 1572864

class G:
    def __init__(s): s.L = []; s.n = 0
    def __call__(s, t):
        for x in t.split("\n"):
            x = x.strip()
            if x: s.L.append(x if x.endswith(":") or x.startswith(".") or x.startswith(";") else "    " + x)
    def lab(s, p):
        s.n += 1; return f"L_{p}_{s.n}"

HEADER = """; Fused decode step: out = x + (softmax(q K^T / sqrt(192)) V wo) * silu(relu(xn w1) w2), q = xn wq, xn = LayerNorm(x).
; Hand-offs go through ws and validate themselves: {bf16 pair, tag} granules, or fp32 words whose low 4 bits are the
; Stores are write-through (sc1) unless all readers were seen (d_debug bytes) to share this workgroup's XCD."""

def gen(X1=3, stamps=0, spin=200000, pre=1, now=0, diag=None, mult=4, noaux=0, fast=1, ctl=1, P0=4, NK=55, LA=1, LB=5,
        PLAX=60, XL=6, XT=2, slp=2, tw=4, PG=20, DD_=6, smx=1, PW=60, GO=2, amap=3, rf=0, th=0, TA=9, TB=9, NX=4, FL=2, abl=0, fl=0, fs=0, NL=6, GW=7, N1=2, N2=1, gap1=0, gap2=0, nor4=0, d2=0, pst=0, tlb=0, ev=1, kt=0, b5=1, ent=1, dl=0, k2=0, fine=0, A2=5, B2=9, adj=1, PT=52, LB2=4, hm=0, slo=3, shi=6, tp=0, cm=3, PF=44, cm2=0, xw=0, pt3=3, qw=0, he=1, XV=None, be=0, pa=0, RL=0, NA=2, ew=1, wst=0, md=0, GT=0, PGB=36, GB=1, sp=0, wx=1, wl=0):
    A = G()
    wr = stamps and diag is None
    if diag is not None: stamps = 1
    NG = 8
    if noaux: spin = 0; ev = 0; k2 = 0; ew = 0
    assert ev or not ew
    assert not wx or (NL == 6 and ew)
    assert not (GT and hm)
    assert not k2 or (ent == 1 and ev)
    POL = ['sc1', 'sc0 sc1', 'sc1 nt', 'sc0 sc1 nt']
    sW, sLID, sG, sJ = 3, 26, 27, 60
    SK, SR2, SWS, SX, SWO, SW2, SOUT = 28, 36, 40, 44, 48, 52, 56
    sTAG, sSTR, sCOLB, sKH, sOUTC, sVAL = 61, 62, 63, 64, 65, 66
    sT0, sT1, sT2, sT3, sOFF, sIT, sSPIN = 67, 68, 69, 70, 71, 72, 73
    sM1, sM2, sM3, sEX = 74, 76, 78, 80
    sSC, sL2E = 82, 83
    sXCC, sFAST = 14, 15
    sT8 = 19
    sH = 4
    sP, sMODE, sREF, sI, sWO, sWM = 14, 15, 20, 21, 16, 17
    sST = 84
    def srd(r): return f"s[{r}:{r+3}]"
    light = stamps == 2
    def stamp(i, keep=False):
        if stamps and (keep or not light):
            A(f"s_memrealtime s[100:101]\ns_waitcnt lgkmcnt(0)\ns_mov_b32 s{sST+i}, s100")
    def mktag(): A(f"s_mul_i32 s{sTAG}, s{sTAG}, 0x9e3779b1\ns_add_u32 s{sTAG}, s{sTAG}, 0x7f4a7c15")
    def masks():
        A(f"""s_mov_b32 s{sM1}, 0xffff0000
              s_mov_b32 s{sM1+1}, 0
              s_mov_b32 s{sM2}, 0
              s_mov_b32 s{sM2+1}, 0xffff
              s_mov_b32 s{sM3}, 0
              s_mov_b32 s{sM3+1}, 0xffff0000""")
    WSN = 0x30000000 if stamps else WS_END

    def poll(loads, tags, sleep=0, mid=None):
        lp = A.lab("poll"); ex = A.lab("pollx"); l1 = A.lab("poll1")
        A(f"s_mov_b32 s{sSPIN}, {spin}")
        if mid:
            for l in loads: A(l)
            mid()
            A(f"s_branch {l1}")
        A(f"{lp}:")
        for l in loads: A(l)
        A(f"{l1}:")
        A(f"s_sub_u32 s{sSPIN}, s{sSPIN}, 1")
        A("s_waitcnt vmcnt(0)")
        A(f"s_cbranch_scc1 {ex}")
        A(f"v_xor_b32 v2, s{sTAG}, v{tags[0]}")
        for t in tags[1:]:
            A(f"v_bitop3_b32 v2, v2, v{t}, s{sTAG} bitop3:0xf6")
        A("v_cmp_ne_u32 vcc, 0, v2\ns_and_b64 exec, exec, vcc")
        if sleep:
            A(f"s_cbranch_execz {ex}\ns_sleep {sleep}\ns_branch {lp}")
        else:
            A(f"s_cbranch_execnz {lp}")
        A(f"{ex}:")

    def ppoll(ns, loads, tags, work, mid=None, gap=0):
        lp = A.lab("pp"); ex = A.lab("ppx")
        n = len(loads(0))
        A(f"s_mov_b32 s{sSPIN}, {spin}")
        for k in range(ns):
            for l in loads(k): A(l)
            if k == 0 and mid: mid()
            elif k < ns - 1: A("s_sleep 1")
        A(f"{lp}:")
        for k in range(ns):
            tg = tags(k)
            A(f"s_waitcnt vmcnt({(ns-1)*n})")
            work(k)
            A(f"v_xor_b32 v2, s{sTAG}, v{tg[0]}")
            for t in tg[1:]: A(f"v_bitop3_b32 v2, v2, v{t}, s{sTAG} bitop3:0xf6")
            A(f"v_cmp_ne_u32 vcc, 0, v2\ns_and_b64 exec, exec, vcc\ns_cbranch_execz {ex}")
            if gap: A(f"s_sleep {gap}")
            for l in loads(k): A(l)
        A(f"s_sub_u32 s{sSPIN}, s{sSPIN}, 1\ns_cbranch_scc0 {lp}\n{ex}:")

    def dma_regs():
        A("; DMA address registers for [192][80] tiles: v60..v64 (piece p = 64i + lane: row p/10, 16-byte column p%10)")
        A(f"s_mov_b32 s{sT0}, 0xcccd")
        for i in range(5):
            A(f"""v_add_u32 v2, {64*i}, v0
                  v_mul_lo_u32 v3, v2, s{sT0}
                  v_lshrrev_b32 v3, 19, v3
                  v_mul_u32_u24 v4, 10, v3
                  v_sub_u32 v4, v2, v4
                  v_mul_u32_u24 v3, 1280, v3
                  v_lshl_add_u32 v{60+i}, v4, 4, v3""")
    def tile_dma(S, soff, win, cnt, base):
        A(f"s_mov_b32 m0, {base}")
        for i in range(cnt):
            if win and i >= win: A(f"s_waitcnt vmcnt({win-1})")
            else: A("s_nop 0")
            A(f"buffer_load_dwordx4 v{60+i%5}, {srd(S)}, s{soff} offen nt lds")
            A("s_add_u32 m0, m0, 1024")
            if i % 5 == 4: A(f"s_add_u32 s{soff}, s{soff}, 40960")
    def w2_par():
        A(f"""s_lshl_b32 s{sT2}, s{sG}, 1
              s_add_u32 s{sT2}, s{sT2}, s{sJ}
              s_sub_u32 s{sT2}, s{sT2}, 6
              s_lshr_b32 s{sT3}, s{sT2}, 3
              s_and_b32 s{sT2}, s{sT2}, 7""")
    def w2_dma(win):
        A(f"""s_mul_i32 s{sOFF}, s{sT3}, 245760
              s_mul_i32 s{sT0}, s{sT2}, 160
              s_add_u32 s{sOFF}, s{sOFF}, s{sT0}""")
        tile_dma(SW2, sOFF, win, 30, L_W2)
    def wo_dma(win):
        if wx:
            A("; column tile 32+j of wo (a quarter of a line that four workgroups share): [192][16], 32 rows per instruction")
            A(f"""s_mul_i32 s{sOFF}, s{35 if hm else sG}, 245760
                  s_lshl_b32 s{sT0}, s{sJ}, 5
                  s_add_u32 s{sOFF}, s{sOFF}, s{sT0}
                  s_add_u32 s{sOFF}, s{sOFF}, 1024
                  v_lshrrev_b32 v2, 1, v0
                  v_mul_u32_u24 v2, 1280, v2
                  v_and_b32 v3, 1, v0
                  s_mov_b32 m0, {L_TW + 24576}
                  v_lshl_add_u32 v2, v3, 4, v2""")
            for i in range(6):
                A(f"buffer_load_dwordx4 v2, {srd(SWO)}, s{sOFF} offen nt lds")
                if i < 5: A(f"s_add_u32 m0, m0, 1024\ns_add_u32 s{sOFF}, s{sOFF}, 40960")
        elif NL * 4 < 30:
            A("; first part of the wo tile")
            A(f"""s_mul_i32 s{sOFF}, s{35 if hm else sG}, 245760
                  s_mul_i32 s{sT0}, s{sJ}, 160
                  s_add_u32 s{sOFF}, s{sOFF}, s{sT0}""")
            tile_dma(SWO, sOFF, win, 30 - 4 * NL, L_TW)

    A(HEADER)
    A(f"; @launch grid=(256,1,1) block=(384,1,1) lds={LDS_BYTES}")
    A('.amdgcn_target "amdgcn-amd-amdhsa--gfx950"\n.text')
    A(f".globl {NAME}_kernel\n.p2align 8\n.type {NAME}_kernel,@function\n{NAME}_kernel:")
    A("s_cmp_ge_u32 s2, 256\ns_cbranch_scc1 L_end")
    A("s_load_dwordx16 s[4:19], s[0:1], 0")
    if not k2:
        A("s_load_dwordx2 s[24:25], s[0:1], 80")
        A("s_load_dwordx4 s[20:23], s[0:1], 64")
    if stamps: A("s_memrealtime s[100:101]")
    vKV, vS, vU, vP, vPL, vPH, vM, vL, vN, vN2, vTAB, vFA, vAD, vREF = 1, 3, 4, 5, 6, 7, 8, 9, 10, 11, 12, 13, 14, 15
    vQ, vACC, vRING = 16, 28, 52
    vSCA, vQA, vMPA, vSPARE, vWD = 148, 149, 150, 152, 200
    assert NX in (0, 2, 4)
    A("v_lshrrev_b32 v1, 6, v0\nv_and_b32 v0, 63, v0")
    A(f"s_and_b32 s{sT2}, s2, 7\ns_lshl_b32 s{sLID}, s{sT2}, 5")
    A(f"v_readfirstlane_b32 s{sW}, v1")
    A(f"s_lshr_b32 s{sT0}, s2, 3\ns_or_b32 s{sLID}, s{sLID}, s{sT0}")
    A(f"s_lshr_b32 s{sG}, s{sLID}, 3\ns_and_b32 s{sJ}, s{sLID}, 7")
    sHD = 35 if hm else sG
    if hm: A(f"s_and_b32 s{sHD}, s{sT0}, 24\ns_or_b32 s{sHD}, s{sHD}, s{sT2}")
    A(f"""s_lshr_b32 s{sT0}, s{sJ}, 1
          s_and_b32 s{sKH}, s{sJ}, 1
          s_mul_i32 s{sOUTC}, s{sHD}, 3
          s_add_u32 s{sOUTC}, s{sOUTC}, s{sT0}
          s_and_b32 s{sT0}, s{sG}, 3
          s_mul_i32 s{sT2}, s{sT2}, 3
          s_add_u32 s{sT2}, s{sT2}, s{sT0}
          s_cmp_lt_u32 s{sT0}, 3
          s_cselect_b32 s{sVAL}, 1966080, 0
          s_cmp_lt_u32 s{sJ}, 6
          s_cselect_b32 s{sVAL}, 7864320, s{sVAL}
          s_cselect_b32 s{sOUTC}, s{sOUTC}, s{sT2}
          s_cselect_b32 s{sSTR}, 4, 1
          s_cselect_b32 s{sT0}, 0, 96
          s_lshl_b32 s{sCOLB}, s{sOUTC}, 7
          s_add_u32 s{sOUTC}, s{sOUTC}, s{sT0}
          s_mul_i32 s{sSTR}, s{sSTR}, 3072
          v_lshrrev_b32 v6, 4, v0
          v_and_b32 v7, 15, v0
          s_sub_u32 s{sW}, s{sW}, 1""")
    X, F = 8, 28
    def stream_par():
        A(f"""v_lshrrev_b32 v2, 3, v0
              v_mul_lo_u32 v3, v2, s{sSTR}
              v_lshlrev_b32 v4, 1, v6
              v_and_b32 v5, 7, v0
              v_xor_b32 v4, v4, v5
              v_lshl_add_u32 v3, v4, 4, v3
              s_lshl2_add_u32 s{sT0}, s{sKH}, s{sW}
              s_mul_i32 s{sT0}, s{sT0}, s{sSTR}
              s_mulk_i32 s{sT0}, 80
              s_add_u32 s{sOFF}, s{sT0}, s{sCOLB}
              s_lshl_b32 s{sT2}, s{sSTR}, 3
              s_mul_i32 s{sT1}, s{sW}, 10240
              s_add_u32 m0, s{sT1}, {L_T2}
              {f"s_add_u32 s{sT1}, s{sT1}, {L_T2+10240}" if dl else ""}
              s_mov_b32 s{SR2+3}, 0x20000
              s_mov_b32 s{SR2+2}, s{sVAL}""")
    def aux_par():
        A(f"""v_mul_u32_u24 v4, 1280, v6
              v_lshl_add_u32 v4, v7, 4, v4
              s_mov_b32 s{SX+3}, 0x20000
              s_mov_b32 s{SX+2}, 5120""")
    def kwait():
        A("s_waitcnt lgkmcnt(0)")
        if stamps: A(f"s_mov_b32 s{sST}, s100")
    def aux_first():
        A(f"s_cmp_eq_u32 s{sW}, 4\ns_cbranch_scc1 L_pacer")
        A(f"s_mov_b32 s{SX}, s4\ns_mov_b32 s{SX+1}, s5")
        for i in range(5): A(f"buffer_load_dwordx4 v[{X+4*i}:{X+4*i+3}], v4, {srd(SX)}, 0 offen offset:{256*i}")
        if not ev: A(f"s_load_dword s{sTAG}, s[24:25], 0")
        A(f"""s_getreg_b32 s{sXCC}, hwreg(HW_REG_XCC_ID, 0, 4)
              s_or_b32 s{sXCC}, s{sXCC}, 0x80
              v_mov_b32 v78, s{sXCC}
              v_mov_b32 v79, s{sLID}
              s_mov_b64 exec, 1
              global_store_byte v79, v78, s[22:23]
              s_mov_b64 exec, 3
              v_mul_u32_u24 v96, {WS_END-16}, v0
              {"global_load_dwordx4 v[100:103], v96, s[24:25]" if ev else ""}
              s_mov_b64 exec, -1""")
        if pre:
            A("; pull the kernel's own code into L2: each of the 32 workgroups that share an L2 touches 5 lines")
            A(f"""s_getpc_b64 s[{sEX}:{sEX+1}]
                  L_pc:
                  s_and_b32 s{sT0}, s{sLID}, 31
                  v_lshl_add_u32 v4, v0, 5, s{sT0}
                  v_lshlrev_b32 v4, 7, v4
                  v_min_u32 v5, L_codeend-L_pc-4, v4
                  s_mov_b64 exec, 31
                  global_load_dword v98, v5, s[{sEX}:{sEX+1}]
                  s_mov_b64 exec, -1""")
        A("s_branch L_aux")
    if ent == 0:
        stream_par(); aux_par()
        A(f"s_cmp_lt_u32 s{sW}, 4"); kwait(); A("s_cbranch_scc1 L_stream")
        aux_first()
    elif ent == 1:
        A(f"s_cmp_lt_u32 s{sW}, 4\ns_cbranch_scc0 L_other")
        stream_par(); kwait()
    elif ent == 2:
        A(f"s_cmp_lt_u32 s{sW}, 4\ns_cbranch_scc1 L_stream0")
        aux_par(); kwait(); aux_first()
        A("L_stream0:")
        stream_par(); kwait()

    A("L_stream:")
    A(f"s_cmp_lt_u32 s{sJ}, 6\ns_cselect_b32 s{SR2}, s10, s16\ns_cselect_b32 s{SR2+1}, s11, s17")
    tab = [f"s_mul_i32 s{sT3}, s{sHD}, 1572864",
           f"s_add_u32 s{SK}, s6, s{sT3}", f"s_addc_u32 s{SK+1}, s7, 0", f"s_add_u32 s8, s8, s{sT3}", "s_addc_u32 s9, s9, 0",
           f"s_mov_b32 s{SK+2}, {3*BSTR + 1572864}", f"s_mov_b32 s{SK+3}, 0x20000",
           f"v_mul_u32_u24 v{vKV}, 384, v2", f"v_lshl_add_u32 v{vKV}, v5, 4, v{vKV}",
           f"v_lshl_add_u32 v8, v7, 2, s{sW}"]
    if amap == 9:
        tab.pop()
        tab += [f"s_lshl2_add_u32 s{sT0}, s{sLID}, s{sW}", f"s_lshl_b32 s{sT0}, s{sT0}, 6",
                f"v_lshl_add_u32 v8, v7, 2, s{sT0}", "global_load_dword v8, v8, s[14:15]", "s_waitcnt vmcnt(0)"]
    elif amap == 3:
        tab.pop()
        tab += ["; block (8 keys) of step t: (w + 4(j&1) + 8(t&1) + 16(j>>1) + 64(t>>1) + 128g) mod 512 - the order DRAM likes best",
                f"s_lshr_b32 s{sT0}, s{sJ}, 1", f"s_lshl3_add_u32 s{sT0}, s{sG}, s{sT0}", f"s_lshl2_add_u32 s{sT0}, s{sT0}, s{sKH}", f"s_lshl2_add_u32 s{sT0}, s{sT0}, s{sW}",
                "v_and_b32 v8, 1, v0", f"v_lshl_add_u32 v8, v8, 3, s{sT0}", "v_lshrrev_b32 v9, 1, v7", "v_lshl_add_u32 v8, v9, 6, v8", "v_and_b32 v8, 0x1ff, v8"]
    elif amap == 2:
        tab.pop()
        RF = [lambda g: 4 * (g & 3), lambda g: 4 * (-g & 3), lambda g: 4 * ((g + (g >> 2)) & 3), lambda g: 4 * ((g ^ (g >> 2)) & 3),
              lambda g: 4 * (0, 2, 1, 3)[g & 3], lambda g: 4 * (g & 3) + ((g >> 2) & 3), lambda g: 4 * (g & 3) + 2 * ((g >> 2) & 1),
              lambda g: 4 * ((g + (g >> 3)) & 3), lambda g: (4 * (g & 3) + (0, 1, 3, 4)[(g >> 2) & 3]) & 15]
        if rf == 0:
            tab += [f"s_lshl_b32 s{sT0}, s{sHD if hm == 1 else sG}, 2"]
        elif rf == 99:
            tab += [f"s_lshl_b32 s{sT0}, s{sG}, 2", f"s_load_dword s{sT0}, s[14:15], s{sT0}", "s_waitcnt lgkmcnt(0)"]
        else:
            rt = sum(RF[rf](g) << (4 * g) for g in range(16))
            tab += [f"s_mov_b32 s18, {rt & 0xffffffff:#x}", f"s_mov_b32 s19, {rt >> 32:#x}", f"s_lshl_b32 s{sT0}, s{sG}, 2", f"s_lshr_b64 s[18:19], s[18:19], s{sT0}", f"s_and_b32 s{sT0}, s18, 15"]
        tab += [f"v_add_u32 v8, s{sT0}, v7", "v_and_b32 v8, 15, v8",
                f"s_lshl2_add_u32 s{sT0}, s{sKH}, s{sW}", f"v_lshl_add_u32 v8, v8, 3, s{sT0}",
                f"s_lshr_b32 s{sT1}, s{sJ}, 1", f"s_cmp_eq_u32 s{sT1}, 3", f"s_cselect_b32 s{sT0}, 0, s{sT1}",
                f"v_mad_u32_u24 v9, v8, 3, s{sT0}", "v_lshrrev_b32 v9, 5, v9",
                f"s_lshl_b32 s{sT1}, s{sT1}, 5", f"s_add_u32 s{sT1}, s{sT1}, 2", f"v_lshl_add_u32 v10, v9, 7, s{sT1}",
                f"s_sub_u32 s{sT1}, 2, s{sT0}", f"v_lshl_add_u32 v11, v9, 5, s{sT1}",
                "v_mul_u32_u24 v10, 0x5556, v10", "v_mul_u32_u24 v11, 0x5556, v11", "v_lshrrev_b32 v10, 16, v10", "v_lshrrev_b32 v11, 16, v11",
                "v_add_u32 v8, v8, v10", "v_sub_u32 v8, v8, v11"]
    elif amap:
        etab = sum(((1, 0, 2)[jj % 3]) << (2 * jj) for jj in range(8))
        tab += [f"s_lshl_b32 s{sT0}, s{sJ}, 1", f"s_lshr_b32 s{sT0}, {etab}, s{sT0}", f"s_and_b32 s{sT0}, s{sT0}, 3",
                f"v_mad_u32_u24 v9, v8, 3, s{sT0}", "v_lshrrev_b32 v9, 5, v9",
                f"s_lshl_b32 s{sT1}, s{sJ}, 5", f"s_add_u32 s{sT1}, s{sT1}, 2", f"v_lshl_add_u32 v10, v9, 8, s{sT1}",
                f"s_sub_u32 s{sT1}, 2, s{sT0}", f"v_lshl_add_u32 v11, v9, 5, s{sT1}",
                "v_mul_u32_u24 v10, 0x5556, v10", "v_mul_u32_u24 v11, 0x5556, v11", "v_lshrrev_b32 v10, 16, v10", "v_lshrrev_b32 v11, 16, v11",
                "v_add_u32 v8, v8, v10", "v_sub_u32 v8, v8, v11"]
    else:
        tab += [f"s_lshl_b32 s{sT0}, s{sJ}, 2", f"s_add_u32 s{sT0}, s{sT0}, s{sW}", f"v_lshl_add_u32 v8, v7, 5, s{sT0}"]
    tab += ["v_lshl_add_u32 v8, v6, 14, v8", f"v_mul_u32_u24 v{vTAB}, 3072, v8"]
    if pst: A("s_memrealtime s[32:33]")
    if dl:
        A(f"""L_dma:
              buffer_load_dwordx4 v3, {srd(SR2)}, s{sOFF} offen nt lds
              s_add_u32 m0, m0, 1024
              s_add_u32 s{sOFF}, s{sOFF}, s{sT2}
              s_cmp_lt_u32 m0, s{sT1}
              s_cbranch_scc1 L_dma""")
    for i in range(0 if dl else 10):
        A(f"buffer_load_dwordx4 v3, {srd(SR2)}, s{sOFF} offen nt lds")
        if i < 9: A(f"s_add_u32 m0, m0, 1024\ns_add_u32 s{sOFF}, s{sOFF}, s{sT2}")
    if pst: A("s_memrealtime s[34:35]")
    if ent == 1:
        if k2: A("s_load_dwordx2 s[24:25], s[0:1], 80")
        A("s_branch L_stream1\nL_other:")
        if k2: A("s_load_dwordx2 s[24:25], s[0:1], 80\ns_load_dwordx4 s[20:23], s[0:1], 64")
        aux_par(); kwait(); aux_first()
        A("L_stream1:")
    for x in tab: A(x)
    A("s_nop 0" if ev else f"s_load_dword s{sTAG}, s[24:25], 0")
    A(f"v_readlane_b32 s{sOFF}, v{vTAB}, 0\nv_readlane_b32 s{sT3}, v{vTAB}, 1")
    def issue(slot, so=None):
        for j in range(3):
            r = (vSPARE + (slot - 100) * 12 if slot >= 100 else vRING + (slot % NG) * 12) + j * 4
            A(f"buffer_load_dwordx4 v[{r}:{r+3}], v{vKV}, {srd(SK)}, s{sOFF if so is None else so} offen offset:{128*j} nt")
    A(f"s_mov_b32 s{sSC}, {f2u(192 ** -0.5):#x}\ns_mov_b32 s{sL2E}, {f2u(1.4426950408889634):#x}")
    for i in range(24): A(f"v_mov_b32 v{vACC+i}, 0")
    A(f"""v_mov_b32 v{vS}, 0
          v_mov_b32 v{vREF}, 0
          v_lshlrev_b32 v{vQA}, 4, v5
          s_lshl_b32 s{sT0}, s{sW}, 11
          v_lshl_add_u32 v{vSCA}, v2, 5, s{sT0}
          s_mul_i32 s{sT0}, s{sW}, 768
          v_mov_b32 v{vMPA}, 0
          v_lshl_add_u32 v{vAD}, v6, 3, s{sT0}
          v_lshl_add_u32 v{vAD}, v5, 5, v{vAD}
          s_lshl_b32 s{sT0}, s{sW}, 2
          v_mov_b32 v{vFA}, s{sT0}
          s_mov_b32 s{sP}, 0
          s_mov_b32 s{sMODE}, 1
          s_mov_b32 s{sI}, {7+NX}""")
    if wr: A(f"s_mov_b32 s{sST+15}, 0")
    if pst: A("s_memrealtime s[52:53]")
    if TA < 10: A(f"s_waitcnt vmcnt({TA})")
    if pst: A("s_memrealtime s[54:55]")
    issue(0)
    if TB < 10: A(f"s_waitcnt vmcnt({TB+3})")
    issue(1, sT3)
    A(f"v_readlane_b32 s{sOFF}, v{vTAB}, 2\ns_nop 1")
    A("s_waitcnt vmcnt(6) lgkmcnt(0)\ns_barrier")
    stamp(1)
    for g in range(2, NG - 1 + NX):
        A(f"s_waitcnt vmcnt({X1 + 3 * max(0, g - (NG - 2 + NX - FL))})")
        issue(g if g < NG - 1 else 100 + g - (NG - 1))
        A(f"v_readlane_b32 s{sOFF}, v{vTAB}, {g+1}\ns_nop 3")
    if not ev: mktag()
    A(f"s_mov_b32 s{SWS}, s24\ns_mov_b32 s{SWS+1}, s25\ns_mov_b32 s{SWS+2}, {WSN}\ns_mov_b32 s{SWS+3}, 0x20000")
    A(f"""s_mov_b32 s{SWO}, s12
          s_mov_b32 s{SWO+1}, s13
          s_mov_b32 s{SWO+2}, 7864320
          s_mov_b32 s{SWO+3}, 0x20000
          s_mul_i32 s{sWO}, s{sHD}, 245760
          s_mul_i32 s{sT0}, s{sJ}, {128 if wx else 160}
          s_add_u32 s{sWO}, s{sWO}, s{sT0}""")
    if wx:
        A("; (column tiles 4j..4j+3 = one whole line per row; rows 48w..48w+47, swizzled like the projection tile)")
        A(f"""s_mul_i32 s{sT0}, s{sW}, {48*1280}
              s_add_u32 s{sWO}, s{sWO}, s{sT0}
              s_mul_i32 s{sWM}, s{sW}, 6144
              s_add_u32 s{sWM}, s{sWM}, {L_TW}
              v_lshrrev_b32 v2, 3, v0
              v_mul_u32_u24 v2, 1280, v2
              v_lshrrev_b32 v4, 4, v0
              v_lshlrev_b32 v4, 1, v4
              v_and_b32 v5, 7, v0
              v_xor_b32 v4, v4, v5
              v_lshl_add_u32 v{vWD}, v4, 4, v2""")
    else:
        A(f"""s_mul_i32 s{sT0}, s{sW}, {NL}
              s_add_u32 s{sT0}, s{sT0}, {30-4*NL}
              s_lshl_b32 s{sWM}, s{sT0}, 10
              s_add_u32 s{sWM}, s{sWM}, {L_TW}
              s_lshl_b32 s{sT0}, s{sT0}, 6
              s_mov_b32 s{sT1}, 0xcccd""")
        for k in range(NL):
            A(f"""v_add_u32 v2, s{sT0}, v0
                  v_mul_lo_u32 v4, v2, s{sT1}
                  v_lshrrev_b32 v4, 19, v4
                  v_mul_u32_u24 v5, 10, v4
                  v_sub_u32 v5, v2, v5
                  v_mul_u32_u24 v4, 1280, v4
                  v_lshl_add_u32 v{vWD+k}, v5, 4, v4
                  s_add_u32 s{sT0}, s{sT0}, 64""")
    stamp(2)
    A("s_barrier")
    stamp(3)

    def mode():
        if ctl:
            A(f"""s_waitcnt lgkmcnt(0)
                  v_readfirstlane_b32 s{sREF}, v{vREF}
                  v_mov_b32 v2, s{sP}
                  s_sub_i32 s{sIT}, s{sP}, s{sREF}
                  {f"s_add_u32 s{sT1}, s{sP}, s{sW}" if md else ""}
                  {f"s_and_b32 s{sT1}, s{sT1}, {md}" if md else ""}
                  {f"s_cselect_b32 s{sT1}, {LA-1}, {LA}" if md else ""}
                  s_cmp_le_i32 s{sIT}, {f"s{sT1}" if md else LA}
                  s_cselect_b32 s{sMODE}, 2, 1
                  {f"s_cmp_ge_u32 s{sP}, {PT}" if PT else ""}
                  {f"s_cselect_b32 s{sT1}, {LB2}, {LB}" if PT else ""}
                  s_cmp_ge_i32 s{sIT}, {f"s{sT1}" if PT else LB}
                  s_cselect_b32 s{sMODE}, 0, s{sMODE}
                  s_cmp_eq_u32 s{sREF}, 0
                  s_cselect_b32 s{sMODE}, 1, s{sMODE}
                  s_cmp_ge_u32 s{sP}, {PLAX}
                  s_cselect_b32 s{sMODE}, 3, s{sMODE}""")
            if wr and not light:
                A(f"""s_max_i32 s{sT1}, s{sIT}, 2
                      s_min_i32 s{sT1}, s{sT1}, 5
                      s_sub_u32 s{sT1}, s{sT1}, 2
                      s_lshl_b32 s{sT1}, s{sT1}, 3
                      s_lshl_b32 s{sT1}, 1, s{sT1}
                      s_cmp_eq_u32 s{sREF}, 0
                      s_cselect_b32 s{sT1}, 0, s{sT1}
                      s_cmp_ge_u32 s{sP}, {PLAX}
                      s_cselect_b32 s{sT1}, 0, s{sT1}
                      s_add_u32 s{sST+15}, s{sST+15}, s{sT1}""")
        else:
            A(f"v_mov_b32 v2, s{sP}\ns_cmp_ge_u32 s{sP}, {PLAX}\ns_cselect_b32 s{sMODE}, 3, 1")
    def mode2(g):
        A(f"""s_waitcnt lgkmcnt(0)
              v_readfirstlane_b32 s{sREF}, v{vREF}
              v_mov_b32 v2, s{sP}
              s_sub_i32 s{sIT}, s{sP}, s{sREF}
              s_lshl_b32 s{sIT}, s{sIT}, 1""")
        if adj: A(f"s_sub_i32 s{sIT}, s{sIT}, s{sMODE}")
        o = (g & 1) + (1 if adj else 0)
        A(f"""s_cmp_le_i32 s{sIT}, {A2 - o}
              s_cselect_b32 s{sMODE}, 2, 1
              s_cmp_ge_i32 s{sIT}, {B2 - o}
              s_cselect_b32 s{sMODE}, 0, s{sMODE}
              s_cmp_eq_u32 s{sREF}, 0
              s_cselect_b32 s{sMODE}, 1, s{sMODE}
              s_cmp_ge_u32 s{sP}, {PLAX}
              s_cselect_b32 s{sMODE}, 3, s{sMODE}""")
    def fetch(g, isv):
        lb = A.lab("w"); lc = A.lab("c"); ln = A.lab("n")
        if fine: mode2(g)
        elif g % 2 == 0: mode()
        if isv and g >= 1:
            A(f"s_cmp_ge_u32 s{sP}, 60\ns_cbranch_scc0 {ln}\ns_waitcnt vmcnt({3*(NG-1-g) + (NL if g > GW else 0)})")
            def dma(k0, k1):
                for k in range(k0, k1):
                    if wx: A(f"s_add_u32 m0, s{sWM}, {1024*k}\ns_add_u32 s{sT1}, s{sWO}, {10240*k}\nbuffer_load_dwordx4 v{vWD}, {srd(SWO)}, s{sT1} offen nt lds")
                    else: A(f"s_add_u32 m0, s{sWM}, {1024*k}\ns_nop 0\nbuffer_load_dwordx4 v{vWD+k}, {srd(SWO)}, s{sWO} offen nt lds")
            if g == GW:
                if RL:
                    assert GW == 6
                    dma(0, NA)
                    A(f"s_mov_b32 s{sT2}, s{sREF}\ns_cmp_le_u32 s{sT2}, {RL}\ns_cbranch_scc1 {lc}")
                    dma(NA, NL)
                else:
                    dma(0, NL)
            if RL and g == 7:
                A(f"s_cmp_le_u32 s{sT2}, {RL}\ns_cbranch_scc0 {lc}\ns_waitcnt vmcnt({NA})")
                dma(NA, NL)
            A(f"s_branch {lc}\n{ln}:")
        if not isv and g < NX:
            A(f"s_cmp_lt_u32 s{sP}, 4\ns_cbranch_scc1 {ln}")
        A(f"s_cmp_ge_u32 s{sMODE}, 3\ns_cbranch_scc1 {lb}")
        if ctl: A(f"s_waitcnt vmcnt({XL})\ns_cmp_ge_u32 s{sMODE}, 2\ns_cbranch_scc1 {lb}")
        if be and isv and g == 7:
            A(f"s_bitcmp1_b32 s{sP}, 2\ns_cbranch_scc1 {lb}")
        A(f"s_waitcnt vmcnt({XV if (isv and XV is not None) else X1})")
        if ctl and not (th and g % 2 == 1): A(f"s_cmp_ge_u32 s{sMODE}, 1\ns_cbranch_scc1 {lb}\ns_waitcnt vmcnt({XT})")
        A(f"{lb}:")
        issue(g + NG - 1)
        A(f"s_add_u32 s{sI}, s{sI}, 1\ns_and_b32 s{sI}, s{sI}, 63")
        if not isv and g == 0:
            A(f"s_cselect_b32 s{SK}, s{SK}, s8\ns_cselect_b32 s{SK+1}, s{SK+1}, s9")
        A(f"v_readlane_b32 s{sOFF}, v{vTAB}, s{sI}")
        if not isv and g < NX: A(f"{ln}:")
        if g % 2 == 0: A(f"ds_write_b32 v{vFA}, v2 offset:{L_FLAG+16}")
        A(f"s_waitcnt vmcnt({3*(NG-1)})")
        A(f"{lc}:")
        if fine and g % 2 == 0: A(f"ds_read_b32 v{vREF}, v{vFA} offset:{L_FLAG}")
        if g % 2 == 1:
            if ctl: A(f"ds_read_b32 v{vREF}, v{vFA} offset:{L_FLAG}")
            A(f"s_add_u32 s{sP}, s{sP}, 1")
    def pstamps():
        if wr and not light:
            A("s_memrealtime s[100:101]\ns_waitcnt lgkmcnt(0)")
            for i in range(1, 8): A(f"s_cmp_eq_u32 s{sP}, {8*i}\ns_cselect_b32 s{sST+5+i}, s100, s{sST+5+i}")
            A(f"s_cmp_eq_u32 s{sP}, 4\ns_cselect_b32 s{sST+13}, s100, s{sST+13}")
            A(f"s_cmp_eq_u32 s{sP}, 60\ns_cselect_b32 s{sST+14}, s100, s{sST+14}")
    if sp: A(f"s_setprio {sp}")
    A(".p2align 3\nL_kbatch:")
    for j in range(3): A(f"ds_read_b128 v[{vQ+4*j}:{vQ+4*j+3}], v{vQA} offset:{L_Q+128*j}")
    A(f"v_add_u32 v{vQA}, 416, v{vQA}\ns_waitcnt lgkmcnt(0)")
    A("L_kloop:")
    for g in range(NG):
        fetch(g, False)
        base = vRING + g * 12
        for i in range(12): A(f"v_dot2c_f32_bf16 v{vS}, v{base+i}, v{vQ+i}")
        A(f"""s_nop 2
              v_add_f32_dpp v{vU}, v{vS}, v{vS} quad_perm:[1,0,3,2] row_mask:0xf bank_mask:0xf
              v_mov_b32 v{vS}, 0
              s_nop 0
              v_add_f32_dpp v{vU}, v{vU}, v{vU} quad_perm:[2,3,0,1] row_mask:0xf bank_mask:0xf
              s_nop 1
              v_add_f32_dpp v{vU}, v{vU}, v{vU} row_half_mirror row_mask:0xf bank_mask:0xf
              v_cvt_pk_bf16_f32 v{vU}, 0, v{vU}
              v_mul_f32 v{vU}, s{sSC}, v{vU}
              v_cvt_pk_bf16_f32 v{vU}, 0, v{vU}
              v_mul_f32 v{vU}, s{sL2E}, v{vU}
              ds_write_b32 v{vSCA}, v{vU} offset:{L_SC+4*g}""")
        if NX and g == 6:
            A(f"s_cmp_lt_u32 s{sP}, 4\ns_cbranch_scc0 L_nospare\ns_waitcnt vmcnt({3*(7-NX)})")
            for x in range(NX):
                for i in range(12): A(f"v_mov_b32 v{vRING + ((7 + x) % NG) * 12 + i}, v{vSPARE + 12 * x + i}")
            A("L_nospare:")
    A(f"v_add_u32 v{vSCA}, 256, v{vSCA}")
    pstamps()
    A(f"""s_bitcmp1_b32 s{sP}, 2
          s_cbranch_scc1 L_kloop
          s_cmp_lt_u32 s{sP}, 32
          s_cbranch_scc1 L_kbatch
          v_subrev_u32 v{vSCA}, 2048, v{vSCA}""")
    A(f""".p2align 3
          L_vbatch:
          ds_read_b128 v[{vM}:{vM+3}], v{vMPA} offset:{L_FLAG+32}
          s_waitcnt lgkmcnt(0)
          v_cmp_eq_u32 vcc, 0, v{vM+2}
          s_cbranch_vccnz L_vbatch
          v_add_u32 v{vMPA}, 16, v{vMPA}
          L_vloop:
          ds_read_b128 v[{vQ}:{vQ+3}], v{vSCA} offset:{L_SC}
          ds_read_b128 v[{vQ+4}:{vQ+7}], v{vSCA} offset:{L_SC+16}
          v_add_u32 v{vSCA}, 256, v{vSCA}
          s_waitcnt lgkmcnt(0)""")
    for g in range(NG):
        if pa and g < 7: fetch(g, True)
        A(f"""v_sub_f32 v{vP}, v{vQ+g}, v{vM}
              v_sub_f32 v{vP}, v{vP}, v{vM+1}
              v_exp_f32 v{vP}, v{vP}
              s_nop 0
              v_cvt_pk_bf16_f32 v{vPL}, v{vP}, 0
              v_cvt_pk_bf16_f32 v{vPH}, 0, v{vP}""")
        if not (pa and g < 7): fetch(g, True)
        base = vRING + g * 12
        for i in range(12):
            A(f"v_dot2c_f32_bf16 v{vACC+2*i}, v{base+i}, v{vPL}")
            A(f"v_dot2c_f32_bf16 v{vACC+2*i+1}, v{base+i}, v{vPH}")
    pstamps()
    A(f"s_bitcmp1_b32 s{sP}, 2\ns_cbranch_scc1 L_vloop")
    if wr: A(f"s_mov_b32 s{sST+4}, s100\ns_mov_b32 s34, s100")
    A(f"s_cmp_ge_u32 s{sP}, 64")
    for j in range(3):
        for e in range(4): A(f"v_permlane32_swap_b32 v{vACC+8*j+e}, v{vACC+8*j+e+4}")
    for j in range(3):
        for e in (0, 2): A(f"v_pk_add_f32 v[{vACC+8*j+e}:{vACC+8*j+e+1}], v[{vACC+8*j+e}:{vACC+8*j+e+1}], v[{vACC+8*j+e+4}:{vACC+8*j+e+5}]")
    for j in range(3):
        for e in range(2): A(f"v_permlane16_swap_b32 v{vACC+8*j+e}, v{vACC+8*j+e+2}")
    for j in range(3): A(f"v_pk_add_f32 v[{vACC+8*j}:{vACC+8*j+1}], v[{vACC+8*j}:{vACC+8*j+1}], v[{vACC+8*j+2}:{vACC+8*j+3}]")
    for j in range(3):
        for e in range(2): A(f"v_add_f32_dpp v{vACC+8*j+e}, v{vACC+8*j+e}, v{vACC+8*j+e} row_ror:8 row_mask:0xf bank_mask:0xf")
        A(f"ds_write_b64 v{vAD}, v[{vACC+8*j}:{vACC+8*j+1}] offset:{L_PART+256*j}")
    if GW == 8:
        assert wx
        A("s_cbranch_scc0 L_vmore")
        for k in range(6): A(f"s_add_u32 m0, s{sWM}, {1024*k}\ns_add_u32 s{sT1}, s{sWO}, {10240*k}\nbuffer_load_dwordx4 v{vWD}, {srd(SWO)}, s{sT1} offen nt lds")
        A("s_waitcnt lgkmcnt(0)\ns_branch L_vdone\nL_vmore:\ns_waitcnt lgkmcnt(0)")
    else:
        A("s_waitcnt lgkmcnt(0)\ns_cbranch_scc1 L_vdone")
    for i in range(24): A(f"v_mov_b32 v{vACC+i}, 0")
    A(f"v_add_u32 v{vAD}, 3072, v{vAD}\ns_branch L_vbatch")
    A("L_vdone:\ns_barrier")
    if sp: A("s_setprio 0")
    if wr: stamp(5, True)
    A(f"""v_lshrrev_b32 v1, 4, v0
          v_and_b32 v3, 3, v0
          v_lshrrev_b32 v2, 2, v0""")
    if wx:
        A(f"""v_bfe_u32 v4, v0, 3, 2
              v_xor_b32 v4, s{sW}, v4
              v_lshl_add_u32 v4, v2, 2, v4
              v_lshl_add_u32 v5, v4, 2, v3
              v_lshlrev_b32 v5, 3, v5
              v_add_u32 v5, {L_TW}, v5
              v_lshlrev_b32 v4, 3, v0
              v_add_u32 v4, {L_TW + 24576}, v4
              s_cmp_eq_u32 s{sW}, 4
              s_waitcnt vmcnt(0)
              s_barrier""")
        if wr: stamp(1)
        A("s_cbranch_scc1 L_b4")
        for s in range(6):
            for hf in range(2): A(f"ds_read_b64_tr_b16 v[{52+4*s+2*hf}:{53+4*s+2*hf}], v5 offset:{4096*s+2048*hf}")
        A(f"s_lshl2_add_u32 s{sOFF}, s{sJ}, s{sW}\ns_branch L_b5\nL_b4:")
        for s in range(6):
            for hf in range(2): A(f"ds_read_b64_tr_b16 v[{52+4*s+2*hf}:{53+4*s+2*hf}], v4 offset:{1024*s+512*hf}")
        A(f"s_add_u32 s{sOFF}, s{sJ}, 32\nL_b5:\ns_mul_i32 s{sT0}, s{sG}, 40\ns_add_u32 s{sOFF}, s{sOFF}, s{sT0}")
    else:
        A(f"""v_mul_u32_u24 v2, 160, v2
              v_lshl_add_u32 v5, v3, 3, v2
              s_lshl_b32 s{sT0}, s{sW}, 5
              s_add_u32 s{sT0}, s{sT0}, {L_TW}
              v_add_u32 v5, s{sT0}, v5
              s_waitcnt vmcnt(0)
              s_barrier""")
        if wr: stamp(1)
        for s in range(6):
            for hf in range(2): A(f"ds_read_b64_tr_b16 v[{52+4*s+2*hf}:{53+4*s+2*hf}], v5 offset:{5120*s+2560*hf}")
        A(f"s_mul_i32 s{sOFF}, s{sLID}, 5\ns_add_u32 s{sOFF}, s{sOFF}, s{sW}")
    A(f"""v_and_b32 v2, 15, v0
          v_mul_u32_u24 v4, 528, v2
          v_lshl_add_u32 v4, v1, 4, v4
          v_lshlrev_b32 v6, 2, v0
          s_movk_i32 s{sT1}, 15
          s_mov_b32 s{sM3}, 0
          s_mov_b32 s{sM3+1}, 0xffff0000
          s_lshl_b32 s{sOFF}, s{sOFF}, 8
          s_add_u32 s{sOFF}, s{sOFF}, {WS_SP}
          v_mov_b32 v13, {0 if ev else f"s{sTAG}"}
          {f"ds_read_b32 v13, v13 offset:{L_FLAG+96}" if ev else ""}
          s_waitcnt lgkmcnt(0)
          s_barrier""")
    if wr: stamp(2)
    for s in range(6): A(f"ds_read_b128 v[{16+4*s}:{19+4*s}], v4 offset:{L_A+64*s}")
    for s in range(6):
        A(f"s_waitcnt lgkmcnt({5-s})")
        A(f"v_mfma_f32_16x16x32_bf16 v[8:11], v[{16+4*s}:{19+4*s}], v[{52+4*s}:{55+4*s}], {'0' if s == 0 else 'v[8:11]'}")
    A(f"""s_nop 7
          v_add_f32 v9, v9, v10
          s_nop 1
          v_permlane32_swap_b32 v10, v9
          v_add_f32 v9, v9, v10
          s_nop 1
          v_permlane16_swap_b32 v10, v9
          v_add_f32 v9, v9, v10
          v_cndmask_b32 v12, v8, v9, s[{sM3}:{sM3+1}]
          v_bfi_b32 v12, s{sT1}, v13, v12
          buffer_store_dword v12, v6, {srd(SWS)}, s{sOFF} offen {POL[fs]}""")
    if wr:
        stamp(3)
        A("s_waitcnt vmcnt(0)")
        stamp(4)
    if b5: A("s_waitcnt vmcnt(0)\ns_barrier")
    if wr:
        if wst:
            A(f"""s_sleep 127
                  s_sleep 127
                  s_lshl_b32 s{sT0}, s2, 3
                  s_add_u32 s{sT0}, s{sT0}, s{sW}
                  s_lshl_b32 s{sT0}, s{sT0}, 4
                  s_add_u32 s{sT0}, s{sT0}, {STAMP_OFF + 0x20000}
                  v_mov_b32 v4, s{sST+11}
                  v_mov_b32 v5, s{sST+12}
                  v_mov_b32 v6, s{sST+14}
                  v_mov_b32 v7, s34
                  v_mov_b32 v2, 0
                  s_mov_b64 exec, 1
                  buffer_store_dwordx4 v[4:7], v2, {srd(SWS)}, s{sT0} offen
                  s_waitcnt vmcnt(0)""")
        if pst: A(f"s_mov_b32 s{sST+1}, s32\ns_mov_b32 s{sST+2}, s34\ns_mov_b32 s{sST+3}, s52\ns_mov_b32 s{sST+4}, s54")
        A(f"s_cmp_lg_u32 s{sW}, 0\ns_cbranch_scc1 L_end")
        A(f"s_lshl_b32 s{sT0}, s2, 8\ns_add_u32 s{sT0}, s{sT0}, {STAMP_OFF+128}")
        A("s_branch L_wrstamps")
    A("s_endpgm")

    if True:
        sK, sMY, sTK, sLB, sCU = sKH, sVAL, sOUTC, 16, 17
        TS = 1280
        A("""; pacing wave (speed only): board c (one line) holds 8 dwords; dword i is set by the workgroup whose check-point is
             ; value is passed on inside the XCD through local boards.  Stream waves ahead of it shrink their load window.""")
        A("L_pacer:")
        if ew:
            A("; the weights that are not fetched at the very end come in the first burst, ahead of K")
            for r, lo, n in ((SWO, 12, 7864320), (SW2, 18, 1966080)):
                A(f"s_mov_b32 s{r}, s{lo}\ns_mov_b32 s{r+1}, s{lo+1}\ns_mov_b32 s{r+2}, {n}\ns_mov_b32 s{r+3}, 0x20000")
            if not wx: dma_regs()
            if not wl: wo_dma(0)
            if ew == 2: A("s_barrier")
            A(f"s_cmp_lt_u32 s{sJ}, 6\ns_cbranch_scc1 L_pc_now2")
            if wx: dma_regs()
            w2_par(); w2_dma(0)
            A("L_pc_now2:")
        A(f"""{"" if ev else f"s_load_dword s{sTAG}, s[24:25], 0"}
              s_mov_b32 s{SWS}, s24
              s_mov_b32 s{SWS+1}, s25
              s_mov_b32 s{SWS+2}, {WSN}
              s_mov_b32 s{SWS+3}, 0x20000
              s_mov_b32 s{sK}, {((P0+DD_-slo+cm) & ~cm) - 1}
              s_lshr_b32 s{sMY}, s2, 3
              s_xor_b32 s{sT0}, s{sMY}, s2
              s_and_b32 s{sT1}, s{sT0}, 4
              s_lshl_b32 s{sT1}, s{sT1}, 3
              s_add_u32 s{sMY}, s{sMY}, s{sT1}
              s_mul_i32 s{sTK}, s{sMY}, {TS}
              s_add_u32 s{sTK}, s{sTK}, {WS_TK + (DD_ + 1 - 7) * TS}
              s_and_b32 s{sT0}, s{sT0}, 3
              s_cselect_b32 s{sMY}, 1000, s{sMY}
              s_cmp_ge_u32 s{sMY}, {NK}
              s_cselect_b32 s{sMY}, 1000, s{sMY}
              s_add_u32 s{sMY}, s{sMY}, {P0}
              s_add_u32 s{sT0}, s{sMY}, {DD_}
              v_sub_u32 v59, s{sT0}, v0
              v_cmp_le_u32 vcc, {PF}, v59
              v_mov_b32 v58, {cm2}
              s_nop 0
              v_cndmask_b32 v58, {cm}, v58, vcc
              v_and_b32 v59, v58, v59
              v_cmp_eq_u32 vcc, 0, v59
              s_and_b64 s[{sM1}:{sM1+1}], vcc, {((1 << (shi + 1)) - 1) & ~((1 << slo) - 1)}
              s_cselect_b32 s{sMY}, s{sMY}, 1000
              v_sub_u32 v59, 7, v0
              v_mul_u32_u24 v59, {TS}, v59
              v_lshl_add_u32 v59, v0, 2, v59
              s_getreg_b32 s{sLB}, hwreg(HW_REG_XCC_ID, 0, 3)
              s_lshl_b32 s{sLB}, s{sLB}, 13
              s_add_u32 s{sLB}, s{sLB}, {WS_LB}
              s_getreg_b32 s{sCU}, hwreg(HW_REG_HW_ID, 8, 1)
              s_lshl_b32 s{sCU}, s{sCU}, 6
              v_lshlrev_b32 v58, 6, v0
              {f"s_lshl_b32 s{sT2}, s{sG}, 13" if GT else ""}
              {f"s_add_u32 s{sT2}, s{sT2}, {WS_GB}" if GT else ""}
              {f"s_lshl_b32 s{sT0}, s{sJ}, 2" if GT else ""}
              {f"v_add_u32 v55, s{sT0}, v58" if GT else ""}
              v_mov_b32 v99, {L_FLAG}
              s_waitcnt lgkmcnt(0)""")
        sc = sT1 if smx else sT0
        if ev:
            if ew != 2: A("s_barrier")
            A(f"s_waitcnt vmcnt(0)\ns_barrier\nds_read_b32 v57, v99 offset:96\ns_waitcnt lgkmcnt(0)\nv_readfirstlane_b32 s{sTAG}, v57")
        else:
            mktag()
            A(f"v_mov_b32 v57, s{sTAG}\ns_barrier\ns_barrier")
        if tlb:
            A("; one workgroup per head touches the pages that come later, through the scalar path, so that their translations are ready")
            A(f"s_cmp_ge_u32 s{sJ}, {tlb}\ns_cbranch_scc1 L_pc_notlb")
            A(f"s_mul_i32 s{sT0}, s{sG}, 1572864\ns_add_u32 s{sT0}, s{sT0}, 786432")
            for base in (6, 8): A(f"s_add_u32 s{base}, s{base}, s{sT0}\ns_addc_u32 s{base+1}, s{base+1}, 0")
            for base in (6, 8):
                for b in range(4):
                    A(f"s_load_dword s32, s[{base}:{base+1}], -786432\ns_load_dword s32, s[{base}:{base+1}], {786432-64}")
                    if b < 3: A(f"s_add_u32 s{base}, s{base}, {BSTR}\ns_addc_u32 s{base+1}, s{base+1}, 0")
                    A("s_waitcnt lgkmcnt(0)")
            A(f"""s_mul_i32 s{sT0}, s{sG}, 245760
                  s_add_u32 s12, s12, s{sT0}
                  s_addc_u32 s13, s13, 0
                  s_load_dword s32, s[12:13], 0
                  s_load_dword s32, s[12:13], {245760-64}
                  s_load_dword s32, s[20:21], 0
                  s_add_u32 s6, s24, {WS_END-64}
                  s_addc_u32 s7, s25, 0
                  s_load_dword s32, s[6:7], 0
                  s_waitcnt lgkmcnt(0)
                  L_pc_notlb:""")
        A(f"""{"" if ctl else "s_branch L_vdone"}
              s_mov_b64 exec, 0xff
              L_pc_loop:
              ds_read_b128 v[8:11], v99 offset:16
              s_waitcnt lgkmcnt(0)
              v_min_u32 v12, v8, v9
              v_min3_u32 v12, v12, v10, v11
              v_max_u32 v8, v8, v9
              v_max3_u32 v8, v8, v10, v11
              v_readfirstlane_b32 s{sT0}, v12
              v_readfirstlane_b32 s{sT1}, v8
              s_cmp_lt_u32 s{sT0}, s{sMY}
              s_cbranch_scc1 L_pc_nopub
              s_mov_b32 s{sMY}, 1000
              s_mov_b64 exec, s[{sM1}:{sM1+1}]
              buffer_store_dword v57, v59, {srd(SWS)}, s{sTK} offen {POL[tp]}
              s_mov_b64 exec, 0xff
              L_pc_nopub:
              s_cmp_ge_u32 s{sT0}, {min(59, P0+NK+1)}
              s_cbranch_scc1 L_pc_out
              s_cmp_le_u32 s{sc}, s{sK}
              s_cbranch_scc1 L_pc_wait
              s_mov_b32 s{sK}, s{sc}
              s_cmp_ge_u32 s{sK}, {PF}
              s_cselect_b32 s{sT1}, {cm2}, {cm}
              s_andn2_b32 s{sT1}, s{sK}, s{sT1}
              s_sub_u32 s{sT1}, s{sT1}, {P0-1}
              s_mul_i32 s{sT1}, s{sT1}, {TS}
              s_add_u32 s{sT1}, s{sT1}, {WS_TK}
              s_load_dwordx8 s[{sH}:{sH+7}], s[24:25], s{sT1}
              s_lshl_b32 s{sT0}, s{sK}, 7
              s_add_u32 s{sT0}, s{sT0}, s{sLB}
              s_add_u32 s{sT1}, s{sT0}, s{sCU}
              s_load_dwordx2 s[12:13], s[24:25], s{sT1}""")
        if GT:
            A(f"""s_mov_b32 s{sIT}, 0
                  s_cmp_lt_u32 s{sK}, {PGB}
                  s_cbranch_scc1 L_pc_nog
                  s_lshl_b32 s{sT3}, s{sK}, 7
                  s_add_u32 s{sT3}, s{sT3}, s{sT2}
                  s_add_u32 s{sT1}, s{sT3}, s{sCU}
                  s_load_dwordx8 s[28:35], s[24:25], s{sT1}
                  s_mov_b64 exec, 3
                  buffer_store_dword v57, v55, {srd(SWS)}, s{sT3} offen
                  s_mov_b64 exec, 0xff
                  s_waitcnt lgkmcnt(0)""")
            for i in range(8): A(f"s_cmp_eq_u32 s{28+i}, s{sTAG}\ns_addc_u32 s{sIT}, s{sIT}, 0")
            A(f"s_cmp_ge_u32 s{sIT}, {GT}\ns_cselect_b32 s{sIT}, {GB}, 0\nL_pc_nog:")
        A(f"""s_sub_u32 s{sT1}, s{sK}, {DD_+1-slo}
              s_waitcnt lgkmcnt(0)""")
        for i in range(slo, shi + 1): A(f"s_cmp_eq_u32 s{sH+i}, s{sTAG}\ns_addc_u32 s{sT1}, s{sT1}, 0")
        A(f"""s_cmp_eq_u32 s13, s{sTAG}
              s_cselect_b32 s12, s12, 0
              s_cmp_gt_u32 s{sT1}, s12
              s_cselect_b32 s{sT1}, s{sT1}, s12
              v_mov_b32 v8, s{sT1}
              {f"v_add_u32 v8, s{sIT}, v8" if GT else ""}
              v_mov_b32 v9, v8
              ds_write2_b64 v99, v[8:9], v[8:9] offset0:0 offset1:1
              s_cbranch_scc0 L_pc_loop
              s_sub_u32 s{sT0}, s{sT0}, {7*128}
              s_mov_b64 exec, 0xffff
              v_mov_b32 v56, s{sT1}
              buffer_store_dwordx2 v[56:57], v58, {srd(SWS)}, s{sT0} offen
              s_mov_b64 exec, 0xff
              s_branch L_pc_loop
              L_pc_wait:
              s_sleep {slp}
              s_branch L_pc_loop
              L_pc_out:
              s_mov_b64 exec, -1""")
        if wl:
            assert ctl
            if wl == 2:
                A(f"""L_pc_w60:
                      ds_read_b128 v[8:11], v99 offset:16
                      s_waitcnt lgkmcnt(0)
                      v_min_u32 v8, v8, v9
                      v_min3_u32 v8, v8, v10, v11
                      v_cmp_gt_u32 vcc, 60, v8
                      s_cbranch_vccnz L_pc_w60""")
            wo_dma(0)
        A("s_branch L_vdone")

    A(".p2align 3\nL_aux:")
    if noaux:
        A(f"s_mov_b32 s{SWS}, s24\ns_mov_b32 s{SWS+1}, s25\ns_mov_b32 s{SWS+2}, 0x30000000\ns_mov_b32 s{SWS+3}, 0x20000")
        A(f"v_lshlrev_b32 v2, 2, v0\nv_lshrrev_b32 v3, 3, v0\ns_mov_b64 exec, 0xffffff\nds_write_b32 v2, v3 offset:{L_FLAG}\ns_mov_b64 exec, -1")
        A("s_waitcnt vmcnt(0) lgkmcnt(0)\ns_barrier\ns_barrier\ns_barrier\ns_barrier\ns_barrier\ns_barrier\ns_branch L_fin")
    A(f"""v_lshrrev_b32 v1, 4, v0
          v_and_b32 v2, 15, v0
          s_lshl_b32 s{sOUTC}, s{sOUTC}, 6""")
    for r, lo, n in ((SWS, 24, WSN), (SWO, 12, 7864320), (SW2, 18, 1966080), (SOUT, 20, 5120)):
        A(f"s_mov_b32 s{r}, s{lo}\ns_mov_b32 s{r+1}, s{lo+1}\ns_mov_b32 s{r+2}, {n}\ns_mov_b32 s{r+3}, 0x20000")
    masks()
    A(f"""s_mov_b32 s{sL2E}, {f2u(1.4426950408889634):#x}
          v_mov_b32 v4, 0x3f803f80
          v_mov_b32 v76, 0
          v_mul_u32_u24 v70, 1312, v1
          v_lshl_add_u32 v70, v2, 4, v70
          s_mul_i32 s{sXCC}, s{sXCC}, 0x01010101
          s_and_b32 s{sT0}, s{sLID}, 0xe0
          s_add_u32 s22, s22, s{sT0}
          s_addc_u32 s23, s23, 0
          s_waitcnt vmcnt({(1 if pre else 0) + ev})""")
    stamp(1)
    A("; ---- LayerNorm: lane (b = l>>4, c = l&15) holds 40 elements of row b; every rounding of the bf16 reference is kept")
    for i in range(20): A(f"v_dot2c_f32_bf16 v76, v{X+i}, v4")
    for i in range(20): A(f"v_lshlrev_b32 v{F+2*i}, 16, v{X+i}\nv_and_b32 v{F+2*i+1}, 0xffff0000, v{X+i}")
    def red16(r):
        for m in ("quad_perm:[1,0,3,2]", "quad_perm:[2,3,0,1]", "row_half_mirror", "row_ror:8"):
            A(f"s_nop 1\nv_add_f32_dpp v{r}, v{r}, v{r} {m} row_mask:0xf bank_mask:0xf")
    if he == 2: A(f"s_load_dwordx8 s[{sH}:{sH+7}], s[22:23], 0")
    red16(76)
    A(f"v_mul_f32 v76, {f2u(1.0/640):#x}, v76")
    A("v_mov_b32 v72, 0\nv_mov_b32 v73, 0")
    for i in range(20):
        A(f"v_pk_add_f32 v[74:75], v[{F+2*i}:{F+2*i+1}], v[76:77] op_sel_hi:[1,0] neg_lo:[0,1] neg_hi:[0,1]")
        A("v_pk_fma_f32 v[72:73], v[74:75], v[74:75], v[72:73]")
    A("v_add_f32 v72, v72, v73")
    red16(72)
    A(f"""v_mul_f32 v72, {f2u(1.0/640):#x}, v72
          v_cvt_pk_bf16_f32 v72, 0, v72
          v_add_f32 v72, {f2u(1e-5):#x}, v72
          v_cvt_pk_bf16_f32 v72, 0, v72
          v_sqrt_f32 v72, v72
          v_cvt_pk_bf16_f32 v76, 0, v76
          v_cvt_pk_bf16_f32 v72, 0, v72
          v_rcp_f32 v72, v72""")
    if he == 1: A(f"s_load_dwordx8 s[{sH}:{sH+7}], s[22:23], 0")
    for i in range(20):
        A(f"v_pk_add_f32 v[{F+2*i}:{F+2*i+1}], v[{F+2*i}:{F+2*i+1}], v[76:77] op_sel_hi:[1,0] neg_lo:[0,1] neg_hi:[0,1]")
        A(f"v_cvt_pk_bf16_f32 v{X+i}, v{F+2*i}, v{F+2*i+1}")
    for i in range(20):
        A(f"v_lshlrev_b32 v{F+2*i}, 16, v{X+i}\nv_and_b32 v{F+2*i+1}, 0xffff0000, v{X+i}")
        A(f"v_pk_mul_f32 v[{F+2*i}:{F+2*i+1}], v[{F+2*i}:{F+2*i+1}], v[72:73] op_sel_hi:[1,0]")
        A(f"v_cvt_pk_bf16_f32 v{X+i}, v{F+2*i}, v{F+2*i+1}")
        if i % 4 == 3: A(f"ds_write_b128 v70, v[{X+i-3}:{X+i}] offset:{L_XN+256*(i//4)}")
    AF = 28
    A(f"""v_and_b32 v3, 3, v0
          v_mul_u32_u24 v71, 1312, v3
          v_lshl_add_u32 v71, v1, 3, v71
          s_mul_i32 s{sT0}, s{sKH}, 640
          s_add_u32 s{sT0}, s{sT0}, {L_XN}
          v_add_u32 v71, s{sT0}, v71
          s_waitcnt {"vmcnt(0) " if ev else ""}lgkmcnt(0)""")
    if ev:
        A("; tag = hash of the first word found in ws, with low 4 bits that none of the 8 words found there has")
        A(f"v_readlane_b32 s{sTAG}, v100, 0")
        for e in range(4): A(f"v_and_b32 v{100+e}, 15, v{100+e}\nv_lshlrev_b32 v{100+e}, v{100+e}, 1")
        A("v_or3_b32 v100, v100, v101, v102\nv_or_b32 v100, v100, v103")
    mktag()
    if ev:
        A(f"""v_readlane_b32 s{sT0}, v100, 0
              v_readlane_b32 s{sT1}, v100, 1
              s_and_b32 s{sT2}, s{sTAG}, 15
              s_or_b32 s{sT0}, s{sT0}, s{sT1}
              s_mul_i32 s{sT0}, s{sT0}, 0x10001
              s_lshr_b32 s{sT0}, s{sT0}, s{sT2}
              s_ff0_i32_b32 s{sT0}, s{sT0}
              s_add_u32 s{sT0}, s{sT0}, s{sT2}
              s_and_b32 s{sT0}, s{sT0}, 15
              s_andn2_b32 s{sTAG}, s{sTAG}, 15
              s_or_b32 s{sTAG}, s{sTAG}, s{sT0}""")
    for s in range(10): A(f"ds_read2_b64 v[{AF+4*s}:{AF+4*s+3}], v71 offset0:{8*s} offset1:{8*s+4}")
    A(f"""v_lshrrev_b32 v68, 2, v0
          v_lshlrev_b32 v68, 7, v68
          v_lshl_add_u32 v68, v3, 3, v68
          v_bfe_u32 v69, v0, 3, 2""")
    for t in range(4): A(f"v_xor_b32 v72, {t}, v69\nv_lshl_add_u32 v{4+t}, v72, 5, v68")
    def hello():
        if not he: A(f"s_load_dwordx8 s[{sH}:{sH+7}], s[22:23], 0")
        A("s_waitcnt lgkmcnt(0)")
        for i in range(8): A(f"s_xor_b32 s{sH+i}, s{sH+i}, s{sXCC}")
        for i in range(1, 4): A(f"s_or_b64 s[{sH}:{sH+1}], s[{sH}:{sH+1}], s[{sH+2*i}:{sH+2*i+1}]")
        A(f"s_cselect_b32 s{sFAST}, 0, {min(fast, 1)}")
        if fast == 2: A(f"s_and_b32 s{sFAST}, s{sFAST}, s{sJ}")
    hello()
    A(f"""s_mul_i32 s{sT0}, s{sKH}, 30720
          s_add_u32 s{sT0}, s{sT0}, s{sOUTC}
          s_lshl_b32 s{sT0}, s{sT0}, 2
          s_add_u32 s{sOFF}, s{sT0}, {WS_QP}""")
    if qw:
        A("; (speed only) untagged first write of our slots: their lines are then in L2 and early polls hit")
        A(f"""s_min_u32 s{sT0}, s{sFAST}, s{sVAL}
              s_cmp_eq_u32 s{sT0}, 0
              s_cbranch_scc1 L_noqw
              v_not_b32 v24, s{sTAG}
              v_mul_u32_u24 v2, 30720, v1
              v_and_b32 v3, 15, v0
              v_lshl_add_u32 v2, v3, 4, v2
              v_mov_b32 v25, v24
              v_mov_b32 v26, v24
              v_mov_b32 v27, v24
              buffer_store_dwordx4 v[24:27], v2, {srd(SWS)}, s{sOFF} offen
              L_noqw:""")
    if stamps: A(f"s_mov_b32 s{sST+15}, s{sFAST}")
    stamp(2)
    A("s_barrier")
    stamp(3)
    D, BR = 8, 72
    def rd(hs):
        s, p = hs // 2, hs % 2
        for tt in range(2):
            t = 2 * p + tt; r = BR + (hs % 3) * 8 + tt * 4
            for hf in range(2):
                A(f"ds_read_b64_tr_b16 v[{r+2*hf}:{r+2*hf+1}], v{4+t} offset:{L_T2+4096*s+2048*hf}")
    rd(0); rd(1)
    for hs in range(20):
        s, p = hs // 2, hs % 2
        if hs + 2 < 20: rd(hs + 2)
        A(f"s_waitcnt lgkmcnt({4*min(2, 19-hs)})")
        for tt in range(2):
            t = 2 * p + tt; r = BR + (hs % 3) * 8 + tt * 4
            c = "0" if s == 0 else f"v[{D+4*t}:{D+4*t+3}]"
            A(f"v_mfma_f32_16x16x32_bf16 v[{D+4*t}:{D+4*t+3}], v[{AF+4*s}:{AF+4*s+3}], v[{r}:{r+3}], {c}")
    A(f"""s_nop 0
          s_and_b32 s{sT8}, s{sTAG}, 15
          v_lshlrev_b32 v70, 3, v0
          v_lshlrev_b32 v66, 2, v0
          v_mov_b32 v28, s{sTAG}
          v_mov_b32 v29, 15
          s_cmp_eq_u32 s{sVAL}, 0
          s_cbranch_scc1 L_nopub""")
    for r in range(4):
        o = 24 + r
        A(f"""v_cndmask_b32 v{o}, v{D+r}, v{D+4+r}, s[{sM1}:{sM1+1}]
              v_cndmask_b32 v{o}, v{o}, v{D+8+r}, s[{sM2}:{sM2+1}]
              v_cndmask_b32 v{o}, v{o}, v{D+12+r}, s[{sM3}:{sM3+1}]
              v_bfi_b32 v{o}, v29, v28, v{o}""")
    def qstores(pol):
        for r in range(4):
            A(f"""buffer_store_dword v{24+r}, v66, {srd(SWS)}, s{sOFF} offen {pol}
                  s_add_u32 s{sOFF}, s{sOFF}, 30720""")
    def rehello():
        l = A.lab("rh")
        A(f"""s_cmp_lg_u32 s{sFAST}, 0
              s_cbranch_scc1 {l}
              v_and_b32 v2, 7, v0
              v_lshlrev_b32 v2, 2, v2
              global_load_dword v3, v2, s[22:23] sc1
              s_waitcnt vmcnt(0)
              v_cmp_ne_u32 vcc, s{sXCC}, v3
              s_cmp_eq_u64 vcc, 0
              s_cselect_b32 s{sFAST}, {min(fast, 1)}, 0""")
        if fast == 2: A(f"s_and_b32 s{sFAST}, s{sFAST}, s{sJ}")
        A(f"{l}:")
    rehello()
    A(f"s_cmp_eq_u32 s{sFAST}, 0\ns_cbranch_scc1 L_qslow")
    qstores("")
    A("s_branch L_nopub\nL_qslow:")
    qstores("sc1")
    A("L_nopub:")
    stamp(4)

    def gather4(ldsoff, relu, sleep):
        GB = 100
        lp = A.lab("g4"); ex = A.lab("g4x")
        for i in range(1, 8): A(f"s_add_u32 s{sH+i}, s{sOFF}, {30720*i}")
        so = [sOFF] + [sH + i for i in range(1, 8)]
        A(f"s_mov_b32 exec_hi, 0xffff\ns_mov_b32 s{sSPIN}, {spin}\n{lp}:")
        for i in range(8): A(f"buffer_load_dwordx4 v[{GB+4*i}:{GB+4*i+3}], v94, {srd(SWS)}, s{so[i]} offen sc1")
        A(f"s_sub_u32 s{sSPIN}, s{sSPIN}, 1\ns_waitcnt vmcnt(0)")
        for e in range(32): A(f"v_xor_b32 v{GB+e}, s{sT8}, v{GB+e}")
        A(f"v_or_b32 v2, v{GB}, v{GB+1}")
        for e in range(2, 32, 2): A(f"v_or3_b32 v2, v2, v{GB+e}, v{GB+e+1}")
        A(f"""s_nop 1
              v_or_b32_dpp v2, v2, v2 quad_perm:[1,0,3,2] row_mask:0xf bank_mask:0xf
              s_cbranch_scc1 {ex}
              s_nop 0
              v_or_b32_dpp v2, v2, v2 quad_perm:[2,3,0,1] row_mask:0xf bank_mask:0xf
              v_and_b32 v2, 15, v2
              v_cmp_ne_u32 vcc, 0, v2
              s_and_b64 exec, exec, vcc""")
        if sleep: A(f"s_cbranch_execz {ex}\ns_sleep {sleep}\ns_branch {lp}")
        else: A(f"s_cbranch_execnz {lp}")
        A(f"{ex}:\ns_mov_b32 exec_lo, -1\ns_mov_b32 exec_hi, 0xffff")
        for b in range(4):
            r = GB + 4 * b
            for e in (0, 2): A(f"v_pk_add_f32 v[{r+e}:{r+e+1}], v[{r+e}:{r+e+1}], v[{r+16+e}:{r+17+e}]")
            if relu:
                for e in range(4): A(f"v_max_f32 v{r+e}, 0, v{r+e}")
            A(f"v_cvt_pk_bf16_f32 v{r}, v{r}, v{r+1}\nv_cvt_pk_bf16_f32 v{r+1}, v{r+2}, v{r+3}")
            A(f"ds_write_b64 v70, v[{r}:{r+1}] offset:{ldsoff+416*b}")
        A("s_mov_b64 exec, -1")

    A(f"""v_lshlrev_b32 v69, 5, v0
          v_lshlrev_b32 v94, 4, v0
          s_mul_i32 s{sOFF}, s{sHD}, 768
          s_add_u32 s{sOFF}, s{sOFF}, {WS_QP}
          v_mov_b32 v99, {L_FLAG}
          v_mov_b32 v32, 0
          v_mov_b32 v33, 0
          ds_write2_b64 v99, v[32:33], v[32:33] offset0:0 offset1:1
          ds_write2_b64 v99, v[32:33], v[32:33] offset0:2 offset1:3
          ds_write2_b64 v99, v[32:33], v[32:33] offset0:4 offset1:5
          ds_write2_b64 v99, v[32:33], v[32:33] offset0:6 offset1:7
          ds_write2_b64 v99, v[32:33], v[32:33] offset0:8 offset1:9
          ds_write2_b64 v99, v[32:33], v[32:33] offset0:10 offset1:11
          ds_write_b32 v99, v28 offset:96""")
    gather4(L_Q, False, 0)
    A("s_waitcnt lgkmcnt(0)")
    stamp(5)
    A("s_barrier")

    if not ew: dma_regs()
    A(f"""v_lshrrev_b32 v2, 2, v0
          v_mul_u32_u24 v2, 160, v2
          v_and_b32 v3, 3, v0
          v_lshl_add_u32 v65, v3, 3, v2
          v_add_u32 v65, {L_W2}, v65""")
    BW = 100
    def tile_frags():
        n = 0
        for t in range(5):
            for s in range(6):
                r = BW + (s * 5 + t) * 4
                for hf in range(2):
                    if n >= 15: A("s_waitcnt lgkmcnt(14)")
                    A(f"ds_read_b64_tr_b16 v[{r+2*hf}:{r+2*hf+1}], v65 offset:{5120*s+2560*hf+32*t}")
                    n += 1
        A("s_waitcnt lgkmcnt(0)")

    A(f"s_cmp_lt_u32 s{sJ}, 6\ns_cbranch_scc1 L_noffn2")
    w2_par()
    if not ew: w2_dma(tw)
    A(f"""s_mul_i32 s{sOFF}, s{sT3}, 768
          s_add_u32 s{sOFF}, s{sOFF}, {WS_QP + 6144*4}""")
    gather4(L_H, True, 4)
    A(f"""v_and_b32 v3, 3, v0
          v_mul_u32_u24 v71, 416, v3
          v_lshl_add_u32 v71, v1, 3, v71
          v_add_u32 v71, {L_H}, v71
          s_waitcnt vmcnt(0) lgkmcnt(0)""")
    for s in range(6): A(f"ds_read2_b64 v[{28+4*s}:{28+4*s+3}], v71 offset0:{8*s} offset1:{8*s+4}")
    A("s_waitcnt lgkmcnt(0)")
    tile_frags()
    for s in range(6):
        for t in range(5):
            c = "0" if s == 0 else f"v[{8+4*t}:{8+4*t+3}]"
            r = BW + (s * 5 + t) * 4
            A(f"v_mfma_f32_16x16x32_bf16 v[{8+4*t}:{8+4*t+3}], v[{28+4*s}:{28+4*s+3}], v[{r}:{r+3}], {c}")
    A(f"""s_mul_i32 s{sOFF}, s{sT3}, 10240
          s_mul_i32 s{sT0}, s{sT2}, 1280
          s_add_u32 s{sOFF}, s{sOFF}, s{sT0}
          s_add_u32 s{sOFF}, s{sOFF}, {WS_YP}
          v_mov_b32 v3, 15
          s_nop 7""")
    for t in range(5):
        o = 28 + 2 * t
        A(f"""v_cndmask_b32 v{o}, v{8+4*t}, v{9+4*t}, s[{sM1}:{sM1+1}]
              v_cndmask_b32 v{o}, v{o}, v{10+4*t}, s[{sM2}:{sM2+1}]
              v_cndmask_b32 v{o}, v{o}, v{11+4*t}, s[{sM3}:{sM3+1}]
              v_bfi_b32 v{o}, v3, s{sTAG}, v{o}
              buffer_store_dword v{o}, v66, {srd(SWS)}, s{sOFF} offen offset:{256*t} sc1""")
    A("L_noffn2:")

    def red4():
        A(f"""s_nop 1
              v_permlane32_swap_b32 v8, v10
              v_permlane32_swap_b32 v9, v11
              v_add_f32 v8, v8, v10
              v_add_f32 v9, v9, v11
              s_nop 1
              v_permlane16_swap_b32 v8, v9
              v_add_f32 v8, v8, v9
              s_nop 1
              v_add_f32_dpp v8, v8, v8 row_ror:8 row_mask:0xf bank_mask:0xf
              s_nop 1
              v_add_f32_dpp v8, v8, v8 row_ror:4 row_mask:0xf bank_mask:0xf""")
    def fpoll(loads, sleep):
        lp = A.lab("fp"); ex = A.lab("fpx")
        n = len(loads)
        A(f"s_mov_b32 s{sSPIN}, {spin}\n{lp}:")
        for l in loads: A(l)
        A(f"s_sub_u32 s{sSPIN}, s{sSPIN}, 1\ns_waitcnt vmcnt(0)")
        if n == 1:
            for e in range(4): A(f"v_xor_b32 v{8+e}, s{sT8}, v{12+e}")
            A("v_or3_b32 v2, v8, v9, v10\nv_or_b32 v2, v2, v11\ns_nop 1")
        else:
            for e in range(8): A(f"v_xor_b32 v{12+e}, s{sT8}, v{12+e}")
            A("""v_or3_b32 v2, v12, v13, v14
                 v_or3_b32 v2, v2, v15, v16
                 v_or3_b32 v2, v2, v17, v18
                 v_or_b32 v2, v2, v19
                 v_pk_add_f32 v[8:9], v[12:13], v[16:17]
                 v_pk_add_f32 v[10:11], v[14:15], v[18:19]""")
        A(f"""v_or_b32_dpp v2, v2, v2 quad_perm:[1,0,3,2] row_mask:0xf bank_mask:0xf
              s_cbranch_scc1 {ex}
              s_nop 0
              v_or_b32_dpp v2, v2, v2 quad_perm:[2,3,0,1] row_mask:0xf bank_mask:0xf
              v_and_b32 v2, 15, v2
              v_cmp_ne_u32 vcc, 0, v2
              s_and_b64 exec, exec, vcc""")
        if sleep: A(f"s_cbranch_execz {ex}\ns_sleep {sleep}\ns_branch {lp}")
        else: A(f"s_cbranch_execnz {lp}")
        A(f"{ex}:")
    sR4 = sCOLB
    sTHR, sOPW, sOPR = 18, sT2, sT3
    A(f"""s_mul_i32 s{sT0}, s{sG}, 5
          s_add_u32 s{sT0}, s{sT0}, s{sJ}
          s_lshl_b32 s{sR4}, s{sT0}, 6
          s_and_b32 s{sT1}, s{sT0}, 3
          s_mul_i32 s{sT1}, s{sT1}, 40
          s_lshr_b32 s{sT0}, s{sT0}, 2
          s_add_u32 s{sT0}, s{sT0}, s{sT1}
          v_lshrrev_b32 v2, 3, v0
          v_lshlrev_b32 v89, 4, v2
          v_lshrrev_b32 v2, 2, v0
          v_mul_u32_u24 v92, 10240, v2
          v_and_b32 v3, 3, v0
          v_lshl_add_u32 v92, v3, 4, v92
          v_lshl_add_u32 v93, v3, 2, v1
          v_lshlrev_b32 v93, 1, v93
          s_lshl_b32 s{sT0}, s{sT0}, 5
          v_add_u32 v93, s{sT0}, v93
          v_mov_b32 v87, v94
          v_lshlrev_b32 v88, 7, v1
          v_mov_b32 v41, s{sTAG}
          v_mov_b32 v43, s{sTAG}""")
    def wait_prog():
        l = A.lab("wp"); x = A.lab("wpx")
        A(f"""{l}:
              ds_read_b128 v[8:11], v99 offset:16
              s_waitcnt lgkmcnt(0)
              v_min_u32 v8, v8, v9
              v_min3_u32 v8, v8, v10, v11
              v_cmp_le_u32 vcc, s{sTHR}, v8
              s_cbranch_vccnz {x}
              s_sleep 4
              s_branch {l}
              {x}:""")
    def store2(ins):
        a = A.lab("sl"); b = A.lab("sd")
        A(f"s_cbranch_scc1 {a}\n{ins}\ns_branch {b}\n{a}:\n{ins} sc1\n{b}:")
    A(f"s_cmp_ge_u32 s{sJ}, 5\ns_cbranch_scc1 L_nogate\ns_mov_b32 s{sTHR}, {PG}")
    wait_prog()
    A(f"""buffer_load_ushort v91, v93, {srd(SX)}, 0 offen
          s_add_u32 s{sOFF}, s{sR4}, {WS_YP}""")
    A("v_mov_b32 v8, 0\nv_mov_b32 v9, 0\nv_mov_b32 v10, 0\nv_mov_b32 v11, 0\ns_mov_b32 exec_hi, 0")
    fpoll([f"buffer_load_dwordx4 v[12:15], v92, {srd(SWS)}, s{sOFF} offen sc1"], 8)
    A("s_mov_b64 exec, -1")
    red4()
    A(f"""v_cvt_pk_bf16_f32 v8, 0, v8
          v_mul_f32 v9, s{sL2E}, v8
          v_exp_f32 v9, -v9
          v_lshlrev_b32 v91, 16, v91
          v_add_f32 v9, 1.0, v9
          v_rcp_f32 v9, v9
          s_nop 0
          v_mul_f32 v8, v8, v9
          v_cvt_pk_bf16_f32 v90, 0, v8
          L_nogate:""")
    stamp(6)
    rehello()
    A(f"""s_mov_b32 s{sTHR}, 24
          s_lshl_b32 s{sOPR}, s{sG}, 9
          s_add_u32 s{sOPR}, s{sOPR}, {WS_ML}
          s_lshl_b32 s{sOPW}, s{sJ}, 4
          s_add_u32 s{sOPW}, s{sOPW}, s{sOPR}
          s_mov_b32 s{sM1}, 0x00010001
          s_mov_b32 s{sM1+1}, 0x00000001
          s_mov_b32 s{sM2}, 0x00ffffff
          s_mov_b32 s{sM2+1}, 0
          L_stats:""")
    wait_prog()
    for w in range(4):
        for h in range(2): A(f"ds_read_b128 v[{8+8*w+4*h}:{11+8*w+4*h}], v69 offset:{L_SC+2048*w+16*h}")
    A("s_waitcnt lgkmcnt(0)\nv_max_f32 v40, v8, v9")
    for i in range(1, 16): A(f"v_max3_f32 v40, v40, v{8+2*i}, v{9+2*i}")
    R16 = ("quad_perm:[1,0,3,2]", "quad_perm:[2,3,0,1]", "row_half_mirror", "row_ror:8")
    for m in R16: A(f"s_nop 1\nv_max_f32_dpp v40, v40, v40 {m} row_mask:0xf bank_mask:0xf")
    for i in range(32): A(f"v_sub_f32 v{8+i}, v{8+i}, v40")
    for i in range(32): A(f"v_exp_f32 v{8+i}, v{8+i}")
    A("v_add_f32 v42, v8, v9")
    for i in range(2, 32): A(f"v_add_f32 v42, v42, v{8+i}")
    red16(42)
    A(f"s_mov_b64 exec, s[{sM1}:{sM1+1}]\ns_cmp_eq_u32 s{sFAST}, 0")
    store2(f"buffer_store_dwordx4 v[40:43], v88, {srd(SWS)}, s{sOPW} offen")
    A(f"s_mov_b64 exec, -1\ns_add_u32 s{sTHR}, s{sTHR}, 3")
    wait_prog()
    A(f"s_mov_b64 exec, s[{sM2}:{sM2+1}]")
    poll([f"buffer_load_dwordx4 v[44:47], v94, {srd(SWS)}, s{sOPR} offen sc1"], [45, 47], 4)
    A("s_mov_b64 exec, -1")
    R8 = R16[:3]
    A(f"v_max_f32_dpp v48, v44, v44 {R8[0]} row_mask:0xf bank_mask:0xf")
    for m in R8[1:]: A(f"s_nop 1\nv_max_f32_dpp v48, v48, v48 {m} row_mask:0xf bank_mask:0xf")
    A("v_sub_f32 v44, v44, v48\nv_exp_f32 v44, v44\ns_nop 0\nv_mul_f32 v44, v44, v46")
    for m in R8: A(f"s_nop 1\nv_add_f32_dpp v44, v44, v44 {m} row_mask:0xf bank_mask:0xf")
    A(f"""v_log_f32 v49, v44
          v_mov_b32 v50, 1
          s_mov_b64 exec, s[{sM2}:{sM2+1}]
          ds_write_b64 v89, v[48:49] offset:{L_FLAG+32}
          ds_write_b32 v89, v50 offset:{L_FLAG+40}
          s_mov_b64 exec, -1
          s_mov_b32 s{sM1}, 0
          s_mov_b32 s{sM1+1}, 0x00010000
          s_mov_b32 s{sM2}, 0xff000000
          s_add_u32 s{sTHR}, s{sTHR}, 5
          s_cmp_lt_u32 s{sTHR}, 40
          s_cbranch_scc1 L_stats""")
    if not ew: wo_dma(tw)
    A(f"""s_mul_i32 s{sOPR}, s{sG}, 24576
          s_add_u32 s{sOPR}, s{sOPR}, {WS_OP}
          s_mul_i32 s{sOPW}, s{sJ}, 768
          s_add_u32 s{sOPW}, s{sOPW}, s{sOPR}
          v_lshrrev_b32 v2, 3, v0
          v_and_b32 v3, 7, v0
          v_mul_u32_u24 v85, 768, v2
          v_lshl_add_u32 v85, v3, 4, v85
          v_and_b32 v3, 3, v0
          v_bfe_u32 v4, v0, 2, 1
          v_lshl_add_u32 v3, v3, 1, v4
          v_lshl_add_u32 v84, v2, 3, v3
          v_lshlrev_b32 v84, 3, v84
          v_lshl_add_u32 v2, v1, 1, v2
          v_mul_u32_u24 v86, 528, v2
          v_lshl_add_u32 v86, v3, 3, v86
          v_add_u32 v86, {L_A + 528}, v86""")
    if pt3 == 2:
        A("; (speed only) untagged first write of our last record: its lines are then in L2 and the neighbours' polls hit")
        A(f"""s_cmp_eq_u32 s{sFAST}, 0
              s_cbranch_scc1 L_batch
              s_add_u32 s{sT1}, s{sOPW}, {3*6144}
              v_not_b32 v45, v41
              v_not_b32 v47, v41
              s_mov_b32 exec_hi, 0xffff
              buffer_store_dwordx4 v[44:47], v94, {srd(SWS)}, s{sT1} offen
              s_mov_b32 exec_hi, -1""")
    if pt3 == 1:
        A("; (first touch of the lines of our last record: brings them into L2 so that the neighbours' polls hit)")
        A(f"""s_add_u32 s{sT1}, s{sOPW}, {3*6144}
              v_lshlrev_b32 v2, 7, v0
              s_mov_b64 exec, 63
              buffer_load_dword v98, v2, {srd(SWS)}, s{sT1} offen sc1
              s_mov_b64 exec, -1""")
    A("L_batch:")
    wait_prog()
    A("L_publish:\ns_mov_b32 exec_hi, 0xffff")
    for w in range(4): A(f"ds_read_b128 v[{8+4*w}:{11+4*w}], v87 offset:{L_PART+768*w}")
    A(f"""s_cmp_eq_u32 s{sFAST}, 0
          s_waitcnt lgkmcnt(2)
          v_pk_add_f32 v[8:9], v[8:9], v[12:13]
          v_pk_add_f32 v[10:11], v[10:11], v[14:15]
          s_waitcnt lgkmcnt(0)
          v_pk_add_f32 v[16:17], v[16:17], v[20:21]
          v_pk_add_f32 v[18:19], v[18:19], v[22:23]
          v_pk_add_f32 v[8:9], v[8:9], v[16:17]
          v_pk_add_f32 v[10:11], v[10:11], v[18:19]
          v_cvt_pk_bf16_f32 v40, v8, v9
          v_cvt_pk_bf16_f32 v42, v10, v11""")
    store2(f"buffer_store_dwordx4 v[40:43], v94, {srd(SWS)}, s{sOPW} offen")
    A(f"""s_mov_b32 exec_hi, -1
          s_cmp_eq_u32 s{sTHR}, 64
          s_cbranch_scc1 L_last
          s_add_u32 s{sOPW}, s{sOPW}, 6144
          v_add_u32 v87, 3072, v87
          s_add_u32 s{sTHR}, s{sTHR}, {GO}""")
    wait_prog()
    A(f"s_add_u32 s{sT0}, s{sOPR}, 3072\ns_add_u32 s{sT1}, s{sOPR}, 6144\ns_mov_b32 exec_hi, 0xffff")
    if not pt3:
        A("; (first touch of the next batch's lines: brings them into L2 so that its polls hit)")
        A(f"v_lshlrev_b32 v2, 7, v0\nbuffer_load_dword v98, v2, {srd(SWS)}, s{sT1} offen sc1")
    ld = []; tg = []
    for r in range(8):
        ld.append(f"buffer_load_dwordx4 v[{8+4*r}:{11+4*r}], v94, {srd(SWS)}, s{sOPR if r < 4 else sT0} offen offset:{768*(r%4)} sc1"); tg += [9 + 4 * r, 11 + 4 * r]
    poll(ld, tg, 2)
    A("s_mov_b32 exec_lo, -1\ns_mov_b32 exec_hi, 0xffff")
    for r in range(8):
        a = 8 + 4 * r
        A(f"v_and_b32 v{a+1}, 0xffff0000, v{a}\nv_lshlrev_b32 v{a}, 16, v{a}\nv_and_b32 v{a+3}, 0xffff0000, v{a+2}\nv_lshlrev_b32 v{a+2}, 16, v{a+2}")
        if r: A(f"v_pk_add_f32 v[8:9], v[8:9], v[{a}:{a+1}]\nv_pk_add_f32 v[10:11], v[10:11], v[{a+2}:{a+3}]")
    A(f"""v_cvt_pk_bf16_f32 v48, v8, v9
          v_cvt_pk_bf16_f32 v49, v10, v11
          ds_write_b64 v84, v[48:49] offset:{L_A}
          s_mov_b32 exec_hi, -1
          v_add_u32 v84, 2112, v84
          s_add_u32 s{sOPR}, s{sOPR}, 6144
          s_add_u32 s{sTHR}, s{sTHR}, {8-GO}
          s_cmp_lt_u32 s{sTHR}, 64
          s_cbranch_scc1 L_batch
          s_add_u32 s{sOFF}, s{sR4}, {WS_SP}""")
    A(f"s_add_u32 s{sH+1}, s{sOFF}, 163840")
    A("s_waitcnt lgkmcnt(0)")
    stamp(7)
    A("s_barrier")
    stamp(8)
    A("s_branch L_publish\nL_last:")
    stamp(9)
    def w1(k):
        for i in range(6): A(f"ds_write2_b32 v86, v{100+24*k+4*i}, v{102+24*k+4*i} offset0:{16*i} offset1:{16*i+1}")
    ppoll(N1, lambda k: [f"buffer_load_dwordx4 v[{100+24*k+4*i}:{103+24*k+4*i}], v85, {srd(SWS)}, s{sOPR} offen offset:{128*i} sc1" for i in range(6)],
          lambda k: [100 + 24 * k + 2 * i + 1 for i in range(12)], w1, lambda: A("s_barrier"), gap1)
    A("s_mov_b64 exec, -1")
    stamp(10)
    A("s_waitcnt lgkmcnt(0)\ns_barrier")
    if xw:
        A("; (speed only) hold the polls back until the four heads next to ours are through as well")
        A(f"""s_cmp_ge_u32 s{sJ}, 5
              s_cbranch_scc1 L_noxw
              v_lshrrev_b32 v2, 3, v0
              v_mul_u32_u24 v3, {24576 - 8*768}, v2
              v_mul_u32_u24 v2, 768, v0
              v_add_u32 v3, v3, v2
              s_and_b32 s{sT0}, s{sG}, 28
              s_mul_i32 s{sT0}, s{sT0}, 24576
              s_add_u32 s{sT0}, s{sT0}, {WS_OP + 3*6144}
              s_mov_b32 exec_hi, 0""")
        poll([f"buffer_load_dword v4, v3, {srd(SWS)}, s{sT0} offen offset:764 sc1"], [4], xw - 1)
        A("s_mov_b64 exec, -1\nL_noxw:")
    if b5 and stamps: A("s_barrier")
    A(f"s_cmp_ge_u32 s{sJ}, {0 if nor4 else 5}\ns_cbranch_scc1 L_fin")
    if b5 and not stamps: A("s_barrier")
    if d2: A(f"s_sleep {d2}")
    stamp(11)
    if N2 == 1:
        fpoll([f"buffer_load_dwordx4 v[{12+4*i}:{15+4*i}], v92, {srd(SWS)}, s{(sOFF, sH+1)[i]} offen {POL[fl]}" for i in range(2)], gap2)
    else:
        def lds2(k):
            for i in range(2): A(f"buffer_load_dwordx4 v[{12+8*k+4*i}:{15+8*k+4*i}], v92, {srd(SWS)}, s{(sOFF, sH+1)[i]} offen {POL[fl]}")
        A(f"s_mov_b32 s{sSPIN}, {spin}")
        for k in range(N2):
            lds2(k)
            if k < N2 - 1: A(f"s_sleep {max(gap2, 1)}")
        A("L_f2:")
        for k in range(N2):
            r = 12 + 8 * k
            A(f"s_waitcnt vmcnt({2*(N2-1)})")
            for e in range(8): A(f"v_xor_b32 v{r+e}, s{sT8}, v{r+e}")
            A(f"""v_or3_b32 v2, v{r}, v{r+1}, v{r+2}
                  v_or3_b32 v2, v2, v{r+3}, v{r+4}
                  v_or3_b32 v2, v2, v{r+5}, v{r+6}
                  v_or_b32 v2, v2, v{r+7}
                  v_pk_add_f32 v[8:9], v[{r}:{r+1}], v[{r+4}:{r+5}]
                  v_pk_add_f32 v[10:11], v[{r+2}:{r+3}], v[{r+6}:{r+7}]
                  v_or_b32_dpp v2, v2, v2 quad_perm:[1,0,3,2] row_mask:0xf bank_mask:0xf
                  s_nop 1
                  v_or_b32_dpp v2, v2, v2 quad_perm:[2,3,0,1] row_mask:0xf bank_mask:0xf
                  v_and_b32 v2, 15, v2
                  v_cmp_ne_u32 vcc, 0, v2
                  s_and_b64 exec, exec, vcc
                  s_cbranch_execz L_f2x""")
            if gap2: A(f"s_sleep {gap2}")
            lds2(k)
        A(f"s_sub_u32 s{sSPIN}, s{sSPIN}, 1\ns_cbranch_scc0 L_f2\nL_f2x:")
    A("s_mov_b64 exec, -1")
    stamp(12)
    red4()
    A(f"""v_cvt_pk_bf16_f32 v8, 0, v8
          v_mul_f32 v8, v8, v90
          v_cvt_pk_bf16_f32 v8, 0, v8
          v_add_f32 v8, v8, v91
          v_cvt_pk_bf16_f32 v8, v8, v8
          s_mov_b32 exec_lo, 0x000f000f
          s_mov_b32 exec_hi, 0x000f000f
          buffer_store_short v8, v93, {srd(SOUT)}, 0 offen
          s_cmp_lg_u32 s{sLID}, 0
          s_cbranch_scc1 L_fin
          s_mov_b64 exec, 3
          v_mov_b32 v40, v41
          v_mov_b32 v42, v41
          buffer_store_dwordx4 v[40:43], v96, {srd(SWS)}, 0 offen""")
    A("L_fin:")
    if diag is not None:
        A("s_waitcnt vmcnt(0)")
        stamp(13)
        if diag == 99: A(f"s_xor_b32 s{sT0}, s{sST+15}, 1\ns_mul_i32 s{sT0}, s{sT0}, 2000\ns_xor_b32 s{sT1}, s{sFAST}, 1\ns_mul_i32 s{sT1}, s{sT1}, 4000\ns_add_u32 s{sT0}, s{sT0}, s{sT1}\ns_add_u32 s{sT0}, s{sT0}, 12000")
        else: A(f"s_sub_u32 s{sT0}, s{sST+diag}, s{sST}\ns_mul_i32 s{sT0}, s{sT0}, {mult}\ns_add_u32 s{sT0}, s{sT0}, 12000\ns_min_u32 s{sT0}, s{sT0}, 100000")
        A(f"L_diag:\ns_memrealtime s[100:101]\ns_waitcnt lgkmcnt(0)\ns_sub_u32 s{sT1}, s100, s{sST}\ns_cmp_lt_u32 s{sT1}, s{sT0}\ns_cbranch_scc1 L_diag")
    if wr:
        A("s_waitcnt vmcnt(0)")
        stamp(13, True)
        A(f"s_lshl_b32 s{sT0}, s2, 8\ns_add_u32 s{sT0}, s{sT0}, {STAMP_OFF}")
        A("L_wrstamps:\ns_sleep 127\ns_sleep 127\ns_sleep 127\ns_mov_b64 exec, 1\nv_mov_b32 v2, 0\nv_mov_b32 v5, 0")
        for i in range(16):
            A(f"v_mov_b32 v4, s{sST+i}\nbuffer_store_dwordx2 v[4:5], v2, {srd(SWS)}, s{sT0} offen offset:{8*i}\ns_waitcnt vmcnt(0)")
    A("L_end:\ns_endpgm\nL_codeend:")
    nv = 220
    A('.section .rodata,"a"\n.p2align 6')
    A(f".amdhsa_kernel {NAME}_kernel")
    A(f".amdhsa_next_free_vgpr {nv}\n.amdhsa_next_free_sgpr 102\n.amdhsa_accum_offset {(nv+3)//4*4}")
    A(".amdhsa_group_segment_fixed_size 0\n.amdhsa_kernarg_size 88\n.amdhsa_user_sgpr_count 2")
    A(".amdhsa_user_sgpr_kernarg_segment_ptr 1\n.amdhsa_system_sgpr_workgroup_id_x 1\n.amdhsa_float_denorm_mode_32 3")
    A(".end_amdhsa_kernel")
    L = A.L
    def drop(f): return [("    s_nop 0" if f(x) else x) for x in L]
    if abl & 1: L = drop(lambda x: "buffer_store_dwordx4 v[40:43], v94" in x)
    if abl & 2: L = drop(lambda x: "buffer_store_dword v2" in x and ", v66," in x and "offset" not in x)
    if abl & 4: L = drop(lambda x: "buffer_store_dword v" in x and ", v66," in x and "offset" in x)
    if abl & 8: L = drop(lambda x: ("buffer_load_dwordx4" in x and ", v94," in x and "offset" in x) or "buffer_load_dword v98, v2" in x)
    if abl & 16: L = drop(lambda x: "buffer_load_dwordx4 v[1" in x and ", v94," in x and "offset" not in x)
    if abl & 32: L = drop(lambda x: "buffer_store_dwordx4 v[40:43], v88" in x or "buffer_load_dwordx4 v[44:47], v94" in x)
    if abl & 64: L = drop(lambda x: "buffer_store_dwordx2 v[56:57]" in x)
    if abl & 128: L = drop(lambda x: "buffer_store_dword v57" in x)
    if abl & 256: L = drop(lambda x: "s[52:55]" in x and "buffer_load" in x)
    if now: L = [("    s_nop 0" if (" lds" in x and "buffer_load" in x) else x) for x in L]
    return "\n".join(L) + "\n"

if __name__ == "__main__":
    for sp in sys.argv[1:]:
        kw = {}
        for kv in sp.split(","):
            k, v = kv.split("=")
            kw[k] = int(v)
        fn = "k_g5" + sp.replace(",", "_").replace("=", "") + ".s"
        open(fn, "w").write(gen(**kw))
        print(fn)
```

```python
import sys, struct
NAME = "recurrent_scan__mha_block_cached__dense_activation_relu__decode"
def f2u(x): return struct.unpack("<I", struct.pack("<f", x))[0]

WS_E, WS_QP, WS_YP, WS_TK, WS_LB, WS_SP, WS_OP, WS_END = 0, 0x1000, 0x40000, 0x60000, 0x80000, 0xD0000, 0x120000, 0x1E0100
WS_GB = 0x90000
WS_ML = 0x58000
STAMP_OFF = 700 << 20
L_XN = 0
L_H = 5248
L_Q = 6912
L_FLAG = 8576
L_SC = 8704
L_T2 = 16896
L_PART = L_T2
L_A = L_T2 + 12288
L_TW = 57856
L_W2 = 88576
LDS_BYTES = 122880
BSTR = 32 * 1572864

class G:
    def __init__(s): s.L = []; s.n = 0
    def __call__(s, t):
        for x in t.split("\n"):
            x = x.strip()
            if x: s.L.append(x if x.endswith(":") or x.startswith(".") or x.startswith(";") else "    " + x)
    def lab(s, p):
        s.n += 1; return f"L_{p}_{s.n}"

HEADER = """; Fused decode step: out = x + (softmax(q K^T / sqrt(192)) V wo) * silu(relu(xn w1) w2), q = xn wq, xn = LayerNorm(x).
; Hand-offs go through ws and validate themselves: {bf16 pair, tag} granules, or fp32 words whose low 4 bits are the
; Stores are write-through (sc1) unless all readers were seen (d_debug bytes) to share this workgroup's XCD."""

def gen(X1=3, stamps=0, spin=200000, pre=1, now=0, diag=None, mult=4, noaux=0, fast=1, ctl=1, P0=4, NK=55, LA=1, LB=5,
        PLAX=60, XL=6, XT=2, slp=2, tw=4, PG=20, DD_=6, smx=1, PW=60, GO=2, amap=3, rf=0, th=0, TA=9, TB=9, NX=4, FL=2, abl=0, fl=0, fs=0, NL=6, GW=7, N1=2, N2=1, gap1=0, gap2=0, nor4=0, d2=0, pst=0, tlb=0, ev=1, kt=0, b5=1, ent=1, dl=0, k2=0, fine=0, A2=5, B2=9, adj=1, PT=52, LB2=4, hm=0, slo=3, shi=6, tp=0, cm=3, PF=44, cm2=0, xw=0, pt3=3, qw=0, he=1, XV=None, be=0, pa=0, RL=0, NA=2, ew=1, wst=0, md=0, GT=0, PGB=36, GB=1, sp=0, wx=1, wl=0, lm=1, skp=0, at=0, at1=1):
    A = G()
    wr = stamps and diag is None
    if diag is not None: stamps = 1
    NG = 8
    if noaux: spin = 0; ev = 0; k2 = 0; ew = 0
    assert ev or not ew
    assert not wx or (NL == 6 and ew)
    assert not (GT and hm)
    assert not k2 or (ent == 1 and ev)
    POL = ['sc1', 'sc0 sc1', 'sc1 nt', 'sc0 sc1 nt', 'nt', 'sc0 nt']
    sW, sLID, sG, sJ = 3, 26, 27, 60
    SK, SR2, SWS, SX, SWO, SW2, SOUT = 28, 36, 40, 44, 48, 52, 56
    sTAG, sSTR, sCOLB, sKH, sOUTC, sVAL = 61, 62, 63, 64, 65, 66
    sT0, sT1, sT2, sT3, sOFF, sIT, sSPIN = 67, 68, 69, 70, 71, 72, 73
    sM1, sM2, sM3, sEX = 74, 76, 78, 80
    sSC, sL2E = 82, 83
    sXCC, sFAST = 14, 15
    sT8 = 19
    sH = 4
    sP, sMODE, sREF, sI, sWO, sWM = 14, 15, 20, 21, 16, 17
    sST = 84
    def srd(r): return f"s[{r}:{r+3}]"
    light = stamps == 2
    def stamp(i, keep=False):
        if stamps and (keep or not light):
            A(f"s_memrealtime s[100:101]\ns_waitcnt lgkmcnt(0)\ns_mov_b32 s{sST+i}, s100")
    def mktag(): A(f"s_mul_i32 s{sTAG}, s{sTAG}, 0x9e3779b1\ns_add_u32 s{sTAG}, s{sTAG}, 0x7f4a7c15")
    def masks():
        A(f"""s_mov_b32 s{sM1}, 0xffff0000
              s_mov_b32 s{sM1+1}, 0
              s_mov_b32 s{sM2}, 0
              s_mov_b32 s{sM2+1}, 0xffff
              s_mov_b32 s{sM3}, 0
              s_mov_b32 s{sM3+1}, 0xffff0000""")
    WSN = 0x30000000 if stamps else WS_END

    def poll(loads, tags, sleep=0, mid=None):
        lp = A.lab("poll"); ex = A.lab("pollx"); l1 = A.lab("poll1")
        A(f"s_mov_b32 s{sSPIN}, {spin}")
        if mid:
            for l in loads: A(l)
            mid()
            A(f"s_branch {l1}")
        A(f"{lp}:")
        for l in loads: A(l)
        A(f"{l1}:")
        A(f"s_sub_u32 s{sSPIN}, s{sSPIN}, 1")
        A("s_waitcnt vmcnt(0)")
        A(f"s_cbranch_scc1 {ex}")
        A(f"v_xor_b32 v2, s{sTAG}, v{tags[0]}")
        for t in tags[1:]:
            A(f"v_bitop3_b32 v2, v2, v{t}, s{sTAG} bitop3:0xf6")
        A("v_cmp_ne_u32 vcc, 0, v2\ns_and_b64 exec, exec, vcc")
        if sleep:
            A(f"s_cbranch_execz {ex}\ns_sleep {sleep}\ns_branch {lp}")
        else:
            A(f"s_cbranch_execnz {lp}")
        A(f"{ex}:")

    def ppoll(ns, loads, tags, work, mid=None, gap=0):
        lp = A.lab("pp"); ex = A.lab("ppx")
        n = len(loads(0))
        A(f"s_mov_b32 s{sSPIN}, {spin}")
        for k in range(ns):
            for l in loads(k): A(l)
            if k == 0 and mid: mid()
            elif k < ns - 1: A("s_sleep 1")
        A(f"{lp}:")
        for k in range(ns):
            tg = tags(k)
            A(f"s_waitcnt vmcnt({(ns-1)*n})")
            work(k)
            A(f"v_xor_b32 v2, s{sTAG}, v{tg[0]}")
            for t in tg[1:]: A(f"v_bitop3_b32 v2, v2, v{t}, s{sTAG} bitop3:0xf6")
            A(f"v_cmp_ne_u32 vcc, 0, v2\ns_and_b64 exec, exec, vcc\ns_cbranch_execz {ex}")
            if gap: A(f"s_sleep {gap}")
            for l in loads(k): A(l)
        A(f"s_sub_u32 s{sSPIN}, s{sSPIN}, 1\ns_cbranch_scc0 {lp}\n{ex}:")

    def dma_regs():
        A("; DMA address registers for [192][80] tiles: v60..v64 (piece p = 64i + lane: row p/10, 16-byte column p%10)")
        A(f"s_mov_b32 s{sT0}, 0xcccd")
        for i in range(5):
            A(f"""v_add_u32 v2, {64*i}, v0
                  v_mul_lo_u32 v3, v2, s{sT0}
                  v_lshrrev_b32 v3, 19, v3
                  v_mul_u32_u24 v4, 10, v3
                  v_sub_u32 v4, v2, v4
                  v_mul_u32_u24 v3, 1280, v3
                  v_lshl_add_u32 v{60+i}, v4, 4, v3""")
    def tile_dma(S, soff, win, cnt, base):
        A(f"s_mov_b32 m0, {base}")
        for i in range(cnt):
            if win and i >= win: A(f"s_waitcnt vmcnt({win-1})")
            else: A("s_nop 0")
            A(f"buffer_load_dwordx4 v{60+i%5}, {srd(S)}, s{soff} offen nt lds")
            A("s_add_u32 m0, m0, 1024")
            if i % 5 == 4: A(f"s_add_u32 s{soff}, s{soff}, 40960")
    def w2_par():
        A(f"""s_lshl_b32 s{sT2}, s{sG}, 1
              s_add_u32 s{sT2}, s{sT2}, s{sJ}
              s_sub_u32 s{sT2}, s{sT2}, 6
              s_lshr_b32 s{sT3}, s{sT2}, 3
              s_and_b32 s{sT2}, s{sT2}, 7""")
    def w2_dma(win):
        A(f"""s_mul_i32 s{sOFF}, s{sT3}, 245760
              s_mul_i32 s{sT0}, s{sT2}, 160
              s_add_u32 s{sOFF}, s{sOFF}, s{sT0}""")
        tile_dma(SW2, sOFF, win, 30, L_W2)
    def wo_dma(win):
        if wx:
            A("; column tile 32+j of wo (a quarter of a line that four workgroups share): [192][16], 32 rows per instruction")
            A(f"""s_mul_i32 s{sOFF}, s{35 if hm else sG}, 245760
                  s_lshl_b32 s{sT0}, s{sJ}, 5
                  s_add_u32 s{sOFF}, s{sOFF}, s{sT0}
                  s_add_u32 s{sOFF}, s{sOFF}, 1024
                  v_lshrrev_b32 v2, 1, v0
                  v_mul_u32_u24 v2, 1280, v2
                  v_and_b32 v3, 1, v0
                  s_mov_b32 m0, {L_TW + 24576}
                  v_lshl_add_u32 v2, v3, 4, v2""")
            for i in range(6):
                A(f"buffer_load_dwordx4 v2, {srd(SWO)}, s{sOFF} offen nt lds")
                if i < 5: A(f"s_add_u32 m0, m0, 1024\ns_add_u32 s{sOFF}, s{sOFF}, 40960")
        elif NL * 4 < 30:
            A("; first part of the wo tile")
            A(f"""s_mul_i32 s{sOFF}, s{35 if hm else sG}, 245760
                  s_mul_i32 s{sT0}, s{sJ}, 160
                  s_add_u32 s{sOFF}, s{sOFF}, s{sT0}""")
            tile_dma(SWO, sOFF, win, 30 - 4 * NL, L_TW)

    A(HEADER)
    A(f"; @launch grid=(256,1,1) block=(384,1,1) lds={LDS_BYTES}")
    A('.amdgcn_target "amdgcn-amd-amdhsa--gfx950"\n.text')
    A(f".globl {NAME}_kernel\n.p2align 8\n.type {NAME}_kernel,@function\n{NAME}_kernel:")
    A("s_cmp_ge_u32 s2, 256\ns_cbranch_scc1 L_end")
    A("s_load_dwordx16 s[4:19], s[0:1], 0")
    if not k2:
        A("s_load_dwordx2 s[24:25], s[0:1], 80")
        A("s_load_dwordx4 s[20:23], s[0:1], 64")
    if stamps: A("s_memrealtime s[100:101]")
    vKV, vS, vU, vP, vPL, vPH, vM, vL, vN, vN2, vTAB, vFA, vAD, vREF = 1, 3, 4, 5, 6, 7, 8, 9, 10, 11, 12, 13, 14, 15
    vQ, vACC, vRING = 16, 28, 52
    vSCA, vQA, vMPA, vSPARE, vWD = 148, 149, 150, 152, 200
    assert NX in (0, 2, 4)
    A("v_lshrrev_b32 v1, 6, v0\nv_and_b32 v0, 63, v0")
    A(f"s_and_b32 s{sT2}, s2, 7\ns_lshl_b32 s{sLID}, s{sT2}, 5")
    A(f"v_readfirstlane_b32 s{sW}, v1")
    A(f"s_lshr_b32 s{sT0}, s2, 3\ns_or_b32 s{sLID}, s{sLID}, s{sT0}")
    A(f"s_lshr_b32 s{sG}, s{sLID}, 3\ns_and_b32 s{sJ}, s{sLID}, 7")
    sHD = 35 if hm else sG
    if hm: A(f"s_and_b32 s{sHD}, s{sT0}, 24\ns_or_b32 s{sHD}, s{sHD}, s{sT2}")
    A(f"""s_lshr_b32 s{sT0}, s{sJ}, 1
          s_and_b32 s{sKH}, s{sJ}, 1
          s_mul_i32 s{sOUTC}, s{sHD}, 3
          s_add_u32 s{sOUTC}, s{sOUTC}, s{sT0}
          s_and_b32 s{sT0}, s{sG}, 3
          s_mul_i32 s{sT2}, s{sT2}, 3
          s_add_u32 s{sT2}, s{sT2}, s{sT0}
          s_cmp_lt_u32 s{sT0}, 3
          s_cselect_b32 s{sVAL}, 1966080, 0
          s_cmp_lt_u32 s{sJ}, 6
          s_cselect_b32 s{sVAL}, 7864320, s{sVAL}
          s_cselect_b32 s{sOUTC}, s{sOUTC}, s{sT2}
          s_cselect_b32 s{sSTR}, 4, 1
          s_cselect_b32 s{sT0}, 0, 96
          s_lshl_b32 s{sCOLB}, s{sOUTC}, 7
          s_add_u32 s{sOUTC}, s{sOUTC}, s{sT0}
          s_mul_i32 s{sSTR}, s{sSTR}, 3072
          v_lshrrev_b32 v6, 4, v0
          v_and_b32 v7, 15, v0
          s_sub_u32 s{sW}, s{sW}, 1""")
    X, F = 8, 28
    def stream_par():
        A(f"""v_lshrrev_b32 v2, 3, v0
              v_mul_lo_u32 v3, v2, s{sSTR}
              v_lshlrev_b32 v4, 1, v6
              v_and_b32 v5, 7, v0
              v_xor_b32 v4, v4, v5
              v_lshl_add_u32 v3, v4, 4, v3
              s_lshl2_add_u32 s{sT0}, s{sKH}, s{sW}
              s_mul_i32 s{sT0}, s{sT0}, s{sSTR}
              s_mulk_i32 s{sT0}, 80
              s_add_u32 s{sOFF}, s{sT0}, s{sCOLB}
              s_lshl_b32 s{sT2}, s{sSTR}, 3
              s_mul_i32 s{sT1}, s{sW}, 10240
              s_add_u32 m0, s{sT1}, {L_T2}
              {f"s_add_u32 s{sT1}, s{sT1}, {L_T2+10240}" if dl else ""}
              s_mov_b32 s{SR2+3}, 0x20000
              s_mov_b32 s{SR2+2}, s{sVAL}""")
    def aux_par():
        A(f"""v_mul_u32_u24 v4, 1280, v6
              v_lshl_add_u32 v4, v7, 4, v4
              s_mov_b32 s{SX+3}, 0x20000
              s_mov_b32 s{SX+2}, 5120""")
    def kwait():
        A("s_waitcnt lgkmcnt(0)")
        if stamps: A(f"s_mov_b32 s{sST}, s100")
    def aux_first():
        A(f"s_cmp_eq_u32 s{sW}, 4\ns_cbranch_scc1 L_pacer")
        A(f"s_mov_b32 s{SX}, s4\ns_mov_b32 s{SX+1}, s5")
        for i in range(5): A(f"buffer_load_dwordx4 v[{X+4*i}:{X+4*i+3}], v4, {srd(SX)}, 0 offen offset:{256*i}")
        if not ev: A(f"s_load_dword s{sTAG}, s[24:25], 0")
        A(f"""s_getreg_b32 s{sXCC}, hwreg(HW_REG_XCC_ID, 0, 4)
              s_or_b32 s{sXCC}, s{sXCC}, 0x80
              v_mov_b32 v78, s{sXCC}
              v_mov_b32 v79, s{sLID}
              s_mov_b64 exec, 1
              global_store_byte v79, v78, s[22:23]
              s_mov_b64 exec, 3
              v_mul_u32_u24 v96, {WS_END-16}, v0
              {"global_load_dwordx4 v[100:103], v96, s[24:25]" if ev else ""}
              s_mov_b64 exec, -1""")
        if pre:
            A("; pull the kernel's own code into L2: each of the 32 workgroups that share an L2 touches 5 lines")
            A(f"""s_getpc_b64 s[{sEX}:{sEX+1}]
                  L_pc:
                  s_and_b32 s{sT0}, s{sLID}, 31
                  v_lshl_add_u32 v4, v0, 5, s{sT0}
                  v_lshlrev_b32 v4, 7, v4
                  v_min_u32 v5, L_codeend-L_pc-4, v4
                  s_mov_b64 exec, 31
                  global_load_dword v98, v5, s[{sEX}:{sEX+1}]
                  s_mov_b64 exec, -1""")
        A("s_branch L_aux")
    if ent == 0:
        stream_par(); aux_par()
        A(f"s_cmp_lt_u32 s{sW}, 4"); kwait(); A("s_cbranch_scc1 L_stream")
        aux_first()
    elif ent == 1:
        A(f"s_cmp_lt_u32 s{sW}, 4\ns_cbranch_scc0 L_other")
        stream_par(); kwait()
    elif ent == 2:
        A(f"s_cmp_lt_u32 s{sW}, 4\ns_cbranch_scc1 L_stream0")
        aux_par(); kwait(); aux_first()
        A("L_stream0:")
        stream_par(); kwait()

    A("L_stream:")
    A(f"s_cmp_lt_u32 s{sJ}, 6\ns_cselect_b32 s{SR2}, s10, s16\ns_cselect_b32 s{SR2+1}, s11, s17")
    tab = [f"s_mul_i32 s{sT3}, s{sHD}, 1572864",
           f"s_add_u32 s{SK}, s6, s{sT3}", f"s_addc_u32 s{SK+1}, s7, 0", f"s_add_u32 s8, s8, s{sT3}", "s_addc_u32 s9, s9, 0",
           f"s_mov_b32 s{SK+2}, {3*BSTR + 1572864}", f"s_mov_b32 s{SK+3}, 0x20000",
           f"v_mul_u32_u24 v{vKV}, 384, v2", f"v_lshl_add_u32 v{vKV}, v5, 4, v{vKV}",
           f"v_lshl_add_u32 v8, v7, 2, s{sW}"]
    if amap == 9:
        tab.pop()
        tab += [f"s_lshl2_add_u32 s{sT0}, s{sLID}, s{sW}", f"s_lshl_b32 s{sT0}, s{sT0}, 6",
                f"v_lshl_add_u32 v8, v7, 2, s{sT0}", "global_load_dword v8, v8, s[14:15]", "s_waitcnt vmcnt(0)"]
    elif amap == 8:
        tab.pop()
        tab[0] = f"s_mov_b32 s{sT3}, 0"; tab[5] = f"s_mov_b32 s{SK+2}, 201326592"
        tab += [f"s_lshl2_add_u32 s{sT0}, s{sLID}, s{sW}", f"s_lshl_b32 s{sT0}, s{sT0}, 8",
                f"v_lshl_add_u32 v8, v0, 2, s{sT0}", "global_load_dword v8, v8, s[14:15]", "s_waitcnt vmcnt(0)"]
    elif amap == 3:
        tab.pop()
        tab += ["; block (8 keys) of step t: (w + 4(j&1) + 8(t&1) + 16(j>>1) + 64(t>>1) + 128g) mod 512 - the order DRAM likes best",
                f"s_lshr_b32 s{sT0}, s{sJ}, 1", f"s_lshl3_add_u32 s{sT0}, s{sG}, s{sT0}", f"s_lshl2_add_u32 s{sT0}, s{sT0}, s{sKH}", f"s_lshl2_add_u32 s{sT0}, s{sT0}, s{sW}",
                "v_and_b32 v8, 1, v0", f"v_lshl_add_u32 v8, v8, 3, s{sT0}", "v_lshrrev_b32 v9, 1, v7", "v_lshl_add_u32 v8, v9, 6, v8", "v_and_b32 v8, 0x1ff, v8"]
    elif amap == 2:
        tab.pop()
        RF = [lambda g: 4 * (g & 3), lambda g: 4 * (-g & 3), lambda g: 4 * ((g + (g >> 2)) & 3), lambda g: 4 * ((g ^ (g >> 2)) & 3),
              lambda g: 4 * (0, 2, 1, 3)[g & 3], lambda g: 4 * (g & 3) + ((g >> 2) & 3), lambda g: 4 * (g & 3) + 2 * ((g >> 2) & 1),
              lambda g: 4 * ((g + (g >> 3)) & 3), lambda g: (4 * (g & 3) + (0, 1, 3, 4)[(g >> 2) & 3]) & 15]
        if rf == 0:
            tab += [f"s_lshl_b32 s{sT0}, s{sHD if hm == 1 else sG}, 2"]
        elif rf == 99:
            tab += [f"s_lshl_b32 s{sT0}, s{sG}, 2", f"s_load_dword s{sT0}, s[14:15], s{sT0}", "s_waitcnt lgkmcnt(0)"]
        else:
            rt = sum(RF[rf](g) << (4 * g) for g in range(16))
            tab += [f"s_mov_b32 s18, {rt & 0xffffffff:#x}", f"s_mov_b32 s19, {rt >> 32:#x}", f"s_lshl_b32 s{sT0}, s{sG}, 2", f"s_lshr_b64 s[18:19], s[18:19], s{sT0}", f"s_and_b32 s{sT0}, s18, 15"]
        tab += [f"v_add_u32 v8, s{sT0}, v7", "v_and_b32 v8, 15, v8",
                f"s_lshl2_add_u32 s{sT0}, s{sKH}, s{sW}", f"v_lshl_add_u32 v8, v8, 3, s{sT0}",
                f"s_lshr_b32 s{sT1}, s{sJ}, 1", f"s_cmp_eq_u32 s{sT1}, 3", f"s_cselect_b32 s{sT0}, 0, s{sT1}",
                f"v_mad_u32_u24 v9, v8, 3, s{sT0}", "v_lshrrev_b32 v9, 5, v9",
                f"s_lshl_b32 s{sT1}, s{sT1}, 5", f"s_add_u32 s{sT1}, s{sT1}, 2", f"v_lshl_add_u32 v10, v9, 7, s{sT1}",
                f"s_sub_u32 s{sT1}, 2, s{sT0}", f"v_lshl_add_u32 v11, v9, 5, s{sT1}",
                "v_mul_u32_u24 v10, 0x5556, v10", "v_mul_u32_u24 v11, 0x5556, v11", "v_lshrrev_b32 v10, 16, v10", "v_lshrrev_b32 v11, 16, v11",
                "v_add_u32 v8, v8, v10", "v_sub_u32 v8, v8, v11"]
    elif amap:
        etab = sum(((1, 0, 2)[jj % 3]) << (2 * jj) for jj in range(8))
        tab += [f"s_lshl_b32 s{sT0}, s{sJ}, 1", f"s_lshr_b32 s{sT0}, {etab}, s{sT0}", f"s_and_b32 s{sT0}, s{sT0}, 3",
                f"v_mad_u32_u24 v9, v8, 3, s{sT0}", "v_lshrrev_b32 v9, 5, v9",
                f"s_lshl_b32 s{sT1}, s{sJ}, 5", f"s_add_u32 s{sT1}, s{sT1}, 2", f"v_lshl_add_u32 v10, v9, 8, s{sT1}",
                f"s_sub_u32 s{sT1}, 2, s{sT0}", f"v_lshl_add_u32 v11, v9, 5, s{sT1}",
                "v_mul_u32_u24 v10, 0x5556, v10", "v_mul_u32_u24 v11, 0x5556, v11", "v_lshrrev_b32 v10, 16, v10", "v_lshrrev_b32 v11, 16, v11",
                "v_add_u32 v8, v8, v10", "v_sub_u32 v8, v8, v11"]
    else:
        tab += [f"s_lshl_b32 s{sT0}, s{sJ}, 2", f"s_add_u32 s{sT0}, s{sT0}, s{sW}", f"v_lshl_add_u32 v8, v7, 5, s{sT0}"]
    tab += ["s_nop 0" if amap == 8 else "v_lshl_add_u32 v8, v6, 14, v8", f"v_mul_u32_u24 v{vTAB}, 3072, v8"]
    if pst: A("s_memrealtime s[32:33]")
    if dl:
        A(f"""L_dma:
              buffer_load_dwordx4 v3, {srd(SR2)}, s{sOFF} offen nt lds
              s_add_u32 m0, m0, 1024
              s_add_u32 s{sOFF}, s{sOFF}, s{sT2}
              s_cmp_lt_u32 m0, s{sT1}
              s_cbranch_scc1 L_dma""")
    for i in range(0 if dl else 10):
        A(f"buffer_load_dwordx4 v3, {srd(SR2)}, s{sOFF} offen nt lds")
        if i < 9: A(f"s_add_u32 m0, m0, 1024\ns_add_u32 s{sOFF}, s{sOFF}, s{sT2}")
    if pst: A("s_memrealtime s[34:35]")
    if ent == 1:
        if k2: A("s_load_dwordx2 s[24:25], s[0:1], 80")
        A("s_branch L_stream1\nL_other:")
        if k2: A("s_load_dwordx2 s[24:25], s[0:1], 80\ns_load_dwordx4 s[20:23], s[0:1], 64")
        aux_par(); kwait(); aux_first()
        A("L_stream1:")
    for x in tab: A(x)
    A("s_nop 0" if ev else f"s_load_dword s{sTAG}, s[24:25], 0")
    A(f"v_readlane_b32 s{sOFF}, v{vTAB}, 0\nv_readlane_b32 s{sT3}, v{vTAB}, 1")
    def issue(slot, so=None):
        for j in range(3):
            r = (vSPARE + (slot - 100) * 12 if slot >= 100 else vRING + (slot % NG) * 12) + j * 4
            A(f"buffer_load_dwordx4 v[{r}:{r+3}], v{vKV}, {srd(SK)}, s{sOFF if so is None else so} offen offset:{128*j} nt")
    A(f"s_mov_b32 s{sSC}, {f2u(192 ** -0.5):#x}\ns_mov_b32 s{sL2E}, {f2u(1.4426950408889634):#x}")
    for i in range(24): A(f"v_mov_b32 v{vACC+i}, 0")
    A(f"""v_mov_b32 v{vS}, 0
          v_mov_b32 v{vREF}, 0
          v_lshlrev_b32 v{vQA}, 4, v5
          s_lshl_b32 s{sT0}, s{sW}, 11
          v_lshl_add_u32 v{vSCA}, v2, 5, s{sT0}
          s_mul_i32 s{sT0}, s{sW}, 768
          v_mov_b32 v{vMPA}, 0
          v_lshl_add_u32 v{vAD}, v6, 3, s{sT0}
          v_lshl_add_u32 v{vAD}, v5, 5, v{vAD}
          s_lshl_b32 s{sT0}, s{sW}, 2
          v_mov_b32 v{vFA}, s{sT0}
          s_mov_b32 s{sP}, 0
          s_mov_b32 s{sMODE}, 1
          s_mov_b32 s{sI}, {7+NX}""")
    if wr: A(f"s_mov_b32 s{sST+15}, 0")
    if pst: A("s_memrealtime s[52:53]")
    if TA < 10: A(f"s_waitcnt vmcnt({TA})")
    if pst: A("s_memrealtime s[54:55]")
    issue(0)
    if TB < 10: A(f"s_waitcnt vmcnt({TB+3})")
    issue(1, sT3)
    A(f"v_readlane_b32 s{sOFF}, v{vTAB}, 2\ns_nop 1")
    A("s_waitcnt vmcnt(6) lgkmcnt(0)\ns_barrier")
    stamp(1)
    for g in range(2, NG - 1 + NX):
        A(f"s_waitcnt vmcnt({X1 + 3 * max(0, g - (NG - 2 + NX - FL))})")
        issue(g if g < NG - 1 else 100 + g - (NG - 1))
        A(f"v_readlane_b32 s{sOFF}, v{vTAB}, {g+1}\ns_nop 3")
    if not ev: mktag()
    A(f"s_mov_b32 s{SWS}, s24\ns_mov_b32 s{SWS+1}, s25\ns_mov_b32 s{SWS+2}, {WSN}\ns_mov_b32 s{SWS+3}, 0x20000")
    A(f"""s_mov_b32 s{SWO}, s12
          s_mov_b32 s{SWO+1}, s13
          s_mov_b32 s{SWO+2}, 7864320
          s_mov_b32 s{SWO+3}, 0x20000
          s_mul_i32 s{sWO}, s{sHD}, 245760
          s_mul_i32 s{sT0}, s{sJ}, {128 if wx else 160}
          s_add_u32 s{sWO}, s{sWO}, s{sT0}""")
    if wx:
        A("; (column tiles 4j..4j+3 = one whole line per row; rows 48w..48w+47, swizzled like the projection tile)")
        A(f"""s_mul_i32 s{sT0}, s{sW}, {48*1280}
              s_add_u32 s{sWO}, s{sWO}, s{sT0}
              s_mul_i32 s{sWM}, s{sW}, 6144
              s_add_u32 s{sWM}, s{sWM}, {L_TW}
              v_lshrrev_b32 v2, 3, v0
              v_mul_u32_u24 v2, 1280, v2
              v_lshrrev_b32 v4, 4, v0
              v_lshlrev_b32 v4, 1, v4
              v_and_b32 v5, 7, v0
              v_xor_b32 v4, v4, v5
              v_lshl_add_u32 v{vWD}, v4, 4, v2""")
    else:
        A(f"""s_mul_i32 s{sT0}, s{sW}, {NL}
              s_add_u32 s{sT0}, s{sT0}, {30-4*NL}
              s_lshl_b32 s{sWM}, s{sT0}, 10
              s_add_u32 s{sWM}, s{sWM}, {L_TW}
              s_lshl_b32 s{sT0}, s{sT0}, 6
              s_mov_b32 s{sT1}, 0xcccd""")
        for k in range(NL):
            A(f"""v_add_u32 v2, s{sT0}, v0
                  v_mul_lo_u32 v4, v2, s{sT1}
                  v_lshrrev_b32 v4, 19, v4
                  v_mul_u32_u24 v5, 10, v4
                  v_sub_u32 v5, v2, v5
                  v_mul_u32_u24 v4, 1280, v4
                  v_lshl_add_u32 v{vWD+k}, v5, 4, v4
                  s_add_u32 s{sT0}, s{sT0}, 64""")
    stamp(2)
    A("s_barrier")
    stamp(3)

    PT_ = PT
    def mode(isv, PT=None):
        lax = isv or PLAX < 32
        if PT is None: PT = PT_ if (isv or PT_ < 32) else 0
        if ctl:
            A(f"""s_waitcnt lgkmcnt(0)
                  v_readfirstlane_b32 s{sREF}, v{vREF}
                  v_mov_b32 v2, s{sP}
                  s_sub_i32 s{sIT}, s{sP}, s{sREF}
                  {f"s_add_u32 s{sT1}, s{sP}, s{sW}" if md else ""}
                  {f"s_and_b32 s{sT1}, s{sT1}, {md}" if md else ""}
                  {f"s_cselect_b32 s{sT1}, {LA-1}, {LA}" if md else ""}
                  s_cmp_le_i32 s{sIT}, {f"s{sT1}" if md else LA}
                  s_cselect_b32 s{sMODE}, 2, 1
                  {f"s_cmp_ge_u32 s{sP}, {PT}" if PT else ""}
                  {f"s_cselect_b32 s{sT1}, {LB2}, {LB}" if PT else ""}
                  s_cmp_ge_i32 s{sIT}, {f"s{sT1}" if PT else LB}
                  s_cselect_b32 s{sMODE}, 0, s{sMODE}
                  s_cmp_eq_u32 s{sREF}, 0
                  s_cselect_b32 s{sMODE}, 1, s{sMODE}""")
            if lax: A(f"s_cmp_ge_u32 s{sP}, {PLAX}\ns_cselect_b32 s{sMODE}, 3, s{sMODE}")
            if wr and not light:
                A(f"""s_max_i32 s{sT1}, s{sIT}, 2
                      s_min_i32 s{sT1}, s{sT1}, 5
                      s_sub_u32 s{sT1}, s{sT1}, 2
                      s_lshl_b32 s{sT1}, s{sT1}, 3
                      s_lshl_b32 s{sT1}, 1, s{sT1}
                      s_cmp_eq_u32 s{sREF}, 0
                      s_cselect_b32 s{sT1}, 0, s{sT1}
                      s_cmp_ge_u32 s{sP}, {PLAX}
                      s_cselect_b32 s{sT1}, 0, s{sT1}
                      s_add_u32 s{sST+15}, s{sST+15}, s{sT1}""")
        else:
            A(f"v_mov_b32 v2, s{sP}\ns_cmp_ge_u32 s{sP}, {PLAX}\ns_cselect_b32 s{sMODE}, 3, 1")
    def mode2(g):
        A(f"""s_waitcnt lgkmcnt(0)
              v_readfirstlane_b32 s{sREF}, v{vREF}
              v_mov_b32 v2, s{sP}
              s_sub_i32 s{sIT}, s{sP}, s{sREF}
              s_lshl_b32 s{sIT}, s{sIT}, 1""")
        if adj: A(f"s_sub_i32 s{sIT}, s{sIT}, s{sMODE}")
        o = (g & 1) + (1 if adj else 0)
        A(f"""s_cmp_le_i32 s{sIT}, {A2 - o}
              s_cselect_b32 s{sMODE}, 2, 1
              s_cmp_ge_i32 s{sIT}, {B2 - o}
              s_cselect_b32 s{sMODE}, 0, s{sMODE}
              s_cmp_eq_u32 s{sREF}, 0
              s_cselect_b32 s{sMODE}, 1, s{sMODE}
              s_cmp_ge_u32 s{sP}, {PLAX}
              s_cselect_b32 s{sMODE}, 3, s{sMODE}""")
    def fetch(g, isv):
        lb = A.lab("w"); lc = A.lab("c"); ln = A.lab("n")
        late_mode = lm and isv and g >= 1 and not fine and not RL
        if fine: mode2(g)
        elif g % 2 == 0 and not late_mode: mode(isv)
        if isv and g >= 1:
            A(f"s_cmp_ge_u32 s{sP}, 60\ns_cbranch_scc0 {ln}\ns_waitcnt vmcnt({3*(NG-1-g) + (NL if g > GW else 0)})")
            def dma(k0, k1):
                for k in range(k0, k1):
                    if wx: A(f"s_add_u32 m0, s{sWM}, {1024*k}\ns_add_u32 s{sT1}, s{sWO}, {10240*k}\nbuffer_load_dwordx4 v{vWD}, {srd(SWO)}, s{sT1} offen nt lds")
                    else: A(f"s_add_u32 m0, s{sWM}, {1024*k}\ns_nop 0\nbuffer_load_dwordx4 v{vWD+k}, {srd(SWO)}, s{sWO} offen nt lds")
            if g == GW:
                if RL:
                    assert GW == 6
                    dma(0, NA)
                    A(f"s_mov_b32 s{sT2}, s{sREF}\ns_cmp_le_u32 s{sT2}, {RL}\ns_cbranch_scc1 {lc}")
                    dma(NA, NL)
                else:
                    dma(0, NL)
            if RL and g == 7:
                A(f"s_cmp_le_u32 s{sT2}, {RL}\ns_cbranch_scc0 {lc}\ns_waitcnt vmcnt({NA})")
                dma(NA, NL)
            if skp and g == 1: A(f"s_add_u32 s{sP}, s{sP}, 2\ns_branch L_skp\n{ln}:")
            else: A(f"s_branch {lc}\n{ln}:")
            if late_mode and g % 2 == 0: mode(PLAX < 60, PT)
        if not isv and g < NX:
            A(f"s_cmp_lt_u32 s{sP}, 4\ns_cbranch_scc1 {ln}")
        if (isv and (g == 0 or PLAX < 60)) or PLAX < 32: A(f"s_cmp_ge_u32 s{sMODE}, 3\ns_cbranch_scc1 {lb}")
        if ctl: A(f"s_waitcnt vmcnt({XL})\ns_cmp_ge_u32 s{sMODE}, 2\ns_cbranch_scc1 {lb}")
        if be and isv and g == 7:
            A(f"s_bitcmp1_b32 s{sP}, 2\ns_cbranch_scc1 {lb}")
        A(f"s_waitcnt vmcnt({XV if (isv and XV is not None) else X1})")
        if ctl and not (th and g % 2 == 1): A(f"s_cmp_ge_u32 s{sMODE}, 1\ns_cbranch_scc1 {lb}\ns_waitcnt vmcnt({XT})")
        A(f"{lb}:")
        issue(g + NG - 1)
        A(f"s_add_u32 s{sI}, s{sI}, 1\ns_and_b32 s{sI}, s{sI}, 63")
        if not isv and g == 0:
            A(f"s_cselect_b32 s{SK}, s{SK}, s8\ns_cselect_b32 s{SK+1}, s{SK+1}, s9")
        A(f"v_readlane_b32 s{sOFF}, v{vTAB}, s{sI}")
        if not isv and g < NX: A(f"{ln}:")
        if g % 2 == 0: A(f"ds_write_b32 v{vFA}, v2 offset:{L_FLAG+16}")
        A(f"s_waitcnt vmcnt({3*(NG-1)})")
        A(f"{lc}:")
        if fine and g % 2 == 0: A(f"ds_read_b32 v{vREF}, v{vFA} offset:{L_FLAG}")
        if g % 2 == 1:
            if ctl: A(f"ds_read_b32 v{vREF}, v{vFA} offset:{L_FLAG}")
            A(f"s_add_u32 s{sP}, s{sP}, 1")
    def pstamps():
        if wr and not light:
            A("s_memrealtime s[100:101]\ns_waitcnt lgkmcnt(0)")
            for i in range(1, 8): A(f"s_cmp_eq_u32 s{sP}, {8*i}\ns_cselect_b32 s{sST+5+i}, s100, s{sST+5+i}")
            A(f"s_cmp_eq_u32 s{sP}, 4\ns_cselect_b32 s{sST+13}, s100, s{sST+13}")
            A(f"s_cmp_eq_u32 s{sP}, 60\ns_cselect_b32 s{sST+14}, s100, s{sST+14}")
    if sp: A(f"s_setprio {sp}")
    A(".p2align 3\nL_kbatch:")
    for j in range(3): A(f"ds_read_b128 v[{vQ+4*j}:{vQ+4*j+3}], v{vQA} offset:{L_Q+128*j}")
    A(f"v_add_u32 v{vQA}, 416, v{vQA}\ns_waitcnt lgkmcnt(0)")
    A("L_kloop:")
    for g in range(NG):
        fetch(g, False)
        base = vRING + g * 12
        for i in range(12): A(f"v_dot2c_f32_bf16 v{vS}, v{base+i}, v{vQ+i}")
        A(f"""s_nop 2
              v_add_f32_dpp v{vU}, v{vS}, v{vS} quad_perm:[1,0,3,2] row_mask:0xf bank_mask:0xf
              v_mov_b32 v{vS}, 0
              s_nop 0
              v_add_f32_dpp v{vU}, v{vU}, v{vU} quad_perm:[2,3,0,1] row_mask:0xf bank_mask:0xf
              s_nop 1
              v_add_f32_dpp v{vU}, v{vU}, v{vU} row_half_mirror row_mask:0xf bank_mask:0xf
              v_cvt_pk_bf16_f32 v{vU}, 0, v{vU}
              v_mul_f32 v{vU}, s{sSC}, v{vU}
              v_cvt_pk_bf16_f32 v{vU}, 0, v{vU}
              v_mul_f32 v{vU}, s{sL2E}, v{vU}
              ds_write_b32 v{vSCA}, v{vU} offset:{L_SC+4*g}""")
        if NX and g == 6:
            A(f"s_cmp_lt_u32 s{sP}, 4\ns_cbranch_scc0 L_nospare\ns_waitcnt vmcnt({3*(7-NX)})")
            for x in range(NX):
                for i in range(12): A(f"v_mov_b32 v{vRING + ((7 + x) % NG) * 12 + i}, v{vSPARE + 12 * x + i}")
            A("L_nospare:")
    A(f"v_add_u32 v{vSCA}, 256, v{vSCA}")
    pstamps()
    A(f"""s_bitcmp1_b32 s{sP}, 2
          s_cbranch_scc1 L_kloop
          s_cmp_lt_u32 s{sP}, 32
          s_cbranch_scc1 L_kbatch
          v_subrev_u32 v{vSCA}, 2048, v{vSCA}""")
    A(f""".p2align 3
          L_vbatch:
          ds_read_b128 v[{vM}:{vM+3}], v{vMPA} offset:{L_FLAG+32}
          s_waitcnt lgkmcnt(0)
          v_cmp_eq_u32 vcc, 0, v{vM+2}
          s_cbranch_vccnz L_vbatch
          v_add_u32 v{vMPA}, 16, v{vMPA}
          L_vloop:
          ds_read_b128 v[{vQ}:{vQ+3}], v{vSCA} offset:{L_SC}
          ds_read_b128 v[{vQ+4}:{vQ+7}], v{vSCA} offset:{L_SC+16}
          v_add_u32 v{vSCA}, 256, v{vSCA}
          s_waitcnt lgkmcnt(0)""")
    for g in range(NG):
        if skp and g == 5: A("L_skp:")
        if pa and g < 7: fetch(g, True)
        A(f"""v_sub_f32 v{vP}, v{vQ+g}, v{vM}
              v_sub_f32 v{vP}, v{vP}, v{vM+1}
              v_exp_f32 v{vP}, v{vP}
              s_nop 0
              v_cvt_pk_bf16_f32 v{vPL}, v{vP}, 0
              v_cvt_pk_bf16_f32 v{vPH}, 0, v{vP}""")
        if not (pa and g < 7): fetch(g, True)
        base = vRING + g * 12
        for i in range(12):
            A(f"v_dot2c_f32_bf16 v{vACC+2*i}, v{base+i}, v{vPL}")
            A(f"v_dot2c_f32_bf16 v{vACC+2*i+1}, v{base+i}, v{vPH}")
    pstamps()
    A(f"s_bitcmp1_b32 s{sP}, 2\ns_cbranch_scc1 L_vloop")
    if wr: A(f"s_mov_b32 s{sST+4}, s100\ns_mov_b32 s34, s100")
    A(f"s_cmp_ge_u32 s{sP}, 64")
    for j in range(3):
        for e in range(4): A(f"v_permlane32_swap_b32 v{vACC+8*j+e}, v{vACC+8*j+e+4}")
    for j in range(3):
        for e in (0, 2): A(f"v_pk_add_f32 v[{vACC+8*j+e}:{vACC+8*j+e+1}], v[{vACC+8*j+e}:{vACC+8*j+e+1}], v[{vACC+8*j+e+4}:{vACC+8*j+e+5}]")
    for j in range(3):
        for e in range(2): A(f"v_permlane16_swap_b32 v{vACC+8*j+e}, v{vACC+8*j+e+2}")
    for j in range(3): A(f"v_pk_add_f32 v[{vACC+8*j}:{vACC+8*j+1}], v[{vACC+8*j}:{vACC+8*j+1}], v[{vACC+8*j+2}:{vACC+8*j+3}]")
    for j in range(3):
        for e in range(2): A(f"v_add_f32_dpp v{vACC+8*j+e}, v{vACC+8*j+e}, v{vACC+8*j+e} row_ror:8 row_mask:0xf bank_mask:0xf")
        A(f"ds_write_b64 v{vAD}, v[{vACC+8*j}:{vACC+8*j+1}] offset:{L_PART+256*j}")
    if GW == 8:
        assert wx
        A("s_cbranch_scc0 L_vmore")
        for k in range(6): A(f"s_add_u32 m0, s{sWM}, {1024*k}\ns_add_u32 s{sT1}, s{sWO}, {10240*k}\nbuffer_load_dwordx4 v{vWD}, {srd(SWO)}, s{sT1} offen nt lds")
        A("s_waitcnt lgkmcnt(0)\ns_branch L_vdone\nL_vmore:\ns_waitcnt lgkmcnt(0)")
    else:
        A("s_waitcnt lgkmcnt(0)\ns_cbranch_scc1 L_vdone")
    for i in range(24): A(f"v_mov_b32 v{vACC+i}, 0")
    A(f"v_add_u32 v{vAD}, 3072, v{vAD}\ns_branch L_vbatch")
    A("L_vdone:\ns_barrier")
    if sp: A("s_setprio 0")
    if wr: stamp(5, True)
    A(f"""v_lshrrev_b32 v1, 4, v0
          v_and_b32 v3, 3, v0
          v_lshrrev_b32 v2, 2, v0""")
    if wx:
        A(f"""v_bfe_u32 v4, v0, 3, 2
              v_xor_b32 v4, s{sW}, v4
              v_lshl_add_u32 v4, v2, 2, v4
              v_lshl_add_u32 v5, v4, 2, v3
              v_lshlrev_b32 v5, 3, v5
              v_add_u32 v5, {L_TW}, v5
              v_lshlrev_b32 v4, 3, v0
              v_add_u32 v4, {L_TW + 24576}, v4
              s_cmp_eq_u32 s{sW}, 4
              s_waitcnt vmcnt(0)
              s_barrier""")
        if wr: stamp(1)
        A("s_cbranch_scc1 L_b4")
        for s in range(6):
            for hf in range(2): A(f"ds_read_b64_tr_b16 v[{52+4*s+2*hf}:{53+4*s+2*hf}], v5 offset:{4096*s+2048*hf}")
        A(f"s_lshl2_add_u32 s{sOFF}, s{sJ}, s{sW}\ns_branch L_b5\nL_b4:")
        for s in range(6):
            for hf in range(2): A(f"ds_read_b64_tr_b16 v[{52+4*s+2*hf}:{53+4*s+2*hf}], v4 offset:{1024*s+512*hf}")
        A(f"s_add_u32 s{sOFF}, s{sJ}, 32\nL_b5:\ns_mul_i32 s{sT0}, s{sG}, 40\ns_add_u32 s{sOFF}, s{sOFF}, s{sT0}")
    else:
        A(f"""v_mul_u32_u24 v2, 160, v2
              v_lshl_add_u32 v5, v3, 3, v2
              s_lshl_b32 s{sT0}, s{sW}, 5
              s_add_u32 s{sT0}, s{sT0}, {L_TW}
              v_add_u32 v5, s{sT0}, v5
              s_waitcnt vmcnt(0)
              s_barrier""")
        if wr: stamp(1)
        for s in range(6):
            for hf in range(2): A(f"ds_read_b64_tr_b16 v[{52+4*s+2*hf}:{53+4*s+2*hf}], v5 offset:{5120*s+2560*hf}")
        A(f"s_mul_i32 s{sOFF}, s{sLID}, 5\ns_add_u32 s{sOFF}, s{sOFF}, s{sW}")
    A(f"""v_and_b32 v2, 15, v0
          v_mul_u32_u24 v4, 528, v2
          v_lshl_add_u32 v4, v1, 4, v4
          v_lshlrev_b32 v6, 2, v0
          s_movk_i32 s{sT1}, 15
          s_mov_b32 s{sM3}, 0
          s_mov_b32 s{sM3+1}, 0xffff0000
          s_lshl_b32 s{sOFF}, s{sOFF}, 8
          s_add_u32 s{sOFF}, s{sOFF}, {WS_SP}
          v_mov_b32 v13, {0 if ev else f"s{sTAG}"}
          {f"ds_read_b32 v13, v13 offset:{L_FLAG+96}" if ev else ""}
          s_waitcnt lgkmcnt(0)
          s_barrier""")
    if wr: stamp(2)
    for s in range(6): A(f"ds_read_b128 v[{16+4*s}:{19+4*s}], v4 offset:{L_A+64*s}")
    for s in range(6):
        A(f"s_waitcnt lgkmcnt({5-s})")
        A(f"v_mfma_f32_16x16x32_bf16 v[8:11], v[{16+4*s}:{19+4*s}], v[{52+4*s}:{55+4*s}], {'0' if s == 0 else 'v[8:11]'}")
    A(f"""s_nop 7
          v_add_f32 v9, v9, v10
          s_nop 1
          v_permlane32_swap_b32 v10, v9
          v_add_f32 v9, v9, v10
          s_nop 1
          v_permlane16_swap_b32 v10, v9
          v_add_f32 v9, v9, v10
          v_cndmask_b32 v12, v8, v9, s[{sM3}:{sM3+1}]
          v_bfi_b32 v12, s{sT1}, v13, v12
          buffer_store_dword v12, v6, {srd(SWS)}, s{sOFF} offen {POL[fs]}""")
    if wr:
        stamp(3)
        A("s_waitcnt vmcnt(0)")
        stamp(4)
    if b5: A("s_waitcnt vmcnt(0)\ns_barrier")
    if wr:
        if wst:
            A(f"""s_sleep 127
                  s_sleep 127
                  s_lshl_b32 s{sT0}, s2, 3
                  s_add_u32 s{sT0}, s{sT0}, s{sW}
                  s_lshl_b32 s{sT0}, s{sT0}, 4
                  s_add_u32 s{sT0}, s{sT0}, {STAMP_OFF + 0x20000}
                  v_mov_b32 v4, s{sST+11}
                  v_mov_b32 v5, s{sST+12}
                  v_mov_b32 v6, s{sST+14}
                  v_mov_b32 v7, s34
                  v_mov_b32 v2, 0
                  s_mov_b64 exec, 1
                  buffer_store_dwordx4 v[4:7], v2, {srd(SWS)}, s{sT0} offen
                  s_waitcnt vmcnt(0)""")
        if pst: A(f"s_mov_b32 s{sST+1}, s32\ns_mov_b32 s{sST+2}, s34\ns_mov_b32 s{sST+3}, s52\ns_mov_b32 s{sST+4}, s54")
        A(f"s_cmp_lg_u32 s{sW}, 0\ns_cbranch_scc1 L_end")
        A(f"s_lshl_b32 s{sT0}, s2, 8\ns_add_u32 s{sT0}, s{sT0}, {STAMP_OFF+128}")
        A("s_branch L_wrstamps")
    A("s_endpgm")

    if True:
        sK, sMY, sTK, sLB, sCU = sKH, sVAL, sOUTC, 16, 17
        TS = 1280
        A("""; pacing wave (speed only): board c (one line) holds 8 dwords; dword i is set by the workgroup whose check-point is
             ; value is passed on inside the XCD through local boards.  Stream waves ahead of it shrink their load window.""")
        A("L_pacer:")
        if ew:
            A("; the weights that are not fetched at the very end come in the first burst, ahead of K")
            for r, lo, n in ((SWO, 12, 7864320), (SW2, 18, 1966080)):
                A(f"s_mov_b32 s{r}, s{lo}\ns_mov_b32 s{r+1}, s{lo+1}\ns_mov_b32 s{r+2}, {n}\ns_mov_b32 s{r+3}, 0x20000")
            if not wx: dma_regs()
            if not wl: wo_dma(0)
            if ew == 2: A("s_barrier")
            A(f"s_cmp_lt_u32 s{sJ}, 6\ns_cbranch_scc1 L_pc_now2")
            if wx: dma_regs()
            w2_par(); w2_dma(0)
            A("L_pc_now2:")
        A(f"""{"" if ev else f"s_load_dword s{sTAG}, s[24:25], 0"}
              s_mov_b32 s{SWS}, s24
              s_mov_b32 s{SWS+1}, s25
              s_mov_b32 s{SWS+2}, {WSN}
              s_mov_b32 s{SWS+3}, 0x20000
              s_mov_b32 s{sK}, {((P0+DD_-slo+cm) & ~cm) - 1}
              s_lshr_b32 s{sMY}, s2, 3
              s_xor_b32 s{sT0}, s{sMY}, s2
              s_and_b32 s{sT1}, s{sT0}, 4
              s_lshl_b32 s{sT1}, s{sT1}, 3
              s_add_u32 s{sMY}, s{sMY}, s{sT1}
              s_mul_i32 s{sTK}, s{sMY}, {TS}
              s_add_u32 s{sTK}, s{sTK}, {WS_TK + (DD_ + 1 - 7) * TS}
              s_and_b32 s{sT0}, s{sT0}, 3
              s_cselect_b32 s{sMY}, 1000, s{sMY}
              s_cmp_ge_u32 s{sMY}, {NK}
              s_cselect_b32 s{sMY}, 1000, s{sMY}
              s_add_u32 s{sMY}, s{sMY}, {P0}
              s_add_u32 s{sT0}, s{sMY}, {DD_}
              v_sub_u32 v59, s{sT0}, v0
              v_cmp_le_u32 vcc, {PF}, v59
              v_mov_b32 v58, {cm2}
              s_nop 0
              v_cndmask_b32 v58, {cm}, v58, vcc
              v_and_b32 v59, v58, v59
              v_cmp_eq_u32 vcc, 0, v59
              s_and_b64 s[{sM1}:{sM1+1}], vcc, {((1 << (shi + 1)) - 1) & ~((1 << slo) - 1)}
              s_cselect_b32 s{sMY}, s{sMY}, 1000
              v_sub_u32 v59, 7, v0
              v_mul_u32_u24 v59, {TS}, v59
              v_lshl_add_u32 v59, v0, 2, v59
              s_getreg_b32 s{sLB}, hwreg(HW_REG_XCC_ID, 0, 3)
              s_lshl_b32 s{sLB}, s{sLB}, 13
              s_add_u32 s{sLB}, s{sLB}, {WS_LB}
              s_getreg_b32 s{sCU}, hwreg(HW_REG_HW_ID, 8, 1)
              s_lshl_b32 s{sCU}, s{sCU}, 6
              v_lshlrev_b32 v58, 6, v0
              {f"s_lshl_b32 s{sT2}, s{sG}, 13" if GT else ""}
              {f"s_add_u32 s{sT2}, s{sT2}, {WS_GB}" if GT else ""}
              {f"s_lshl_b32 s{sT0}, s{sJ}, 2" if GT else ""}
              {f"v_add_u32 v55, s{sT0}, v58" if GT else ""}
              v_mov_b32 v99, {L_FLAG}
              s_waitcnt lgkmcnt(0)""")
        sc = sT1 if smx else sT0
        if ev:
            if ew != 2: A("s_barrier")
            A(f"s_waitcnt vmcnt(0)\ns_barrier\nds_read_b32 v57, v99 offset:96\ns_waitcnt lgkmcnt(0)\nv_readfirstlane_b32 s{sTAG}, v57")
        else:
            mktag()
            A(f"v_mov_b32 v57, s{sTAG}\ns_barrier\ns_barrier")
        if tlb:
            A("; one workgroup per head touches the pages that come later, through the scalar path, so that their translations are ready")
            A(f"s_cmp_ge_u32 s{sJ}, {tlb}\ns_cbranch_scc1 L_pc_notlb")
            A(f"s_mul_i32 s{sT0}, s{sG}, 1572864\ns_add_u32 s{sT0}, s{sT0}, 786432")
            for base in (6, 8): A(f"s_add_u32 s{base}, s{base}, s{sT0}\ns_addc_u32 s{base+1}, s{base+1}, 0")
            for base in (6, 8):
                for b in range(4):
                    A(f"s_load_dword s32, s[{base}:{base+1}], -786432\ns_load_dword s32, s[{base}:{base+1}], {786432-64}")
                    if b < 3: A(f"s_add_u32 s{base}, s{base}, {BSTR}\ns_addc_u32 s{base+1}, s{base+1}, 0")
                    A("s_waitcnt lgkmcnt(0)")
            A(f"""s_mul_i32 s{sT0}, s{sG}, 245760
                  s_add_u32 s12, s12, s{sT0}
                  s_addc_u32 s13, s13, 0
                  s_load_dword s32, s[12:13], 0
                  s_load_dword s32, s[12:13], {245760-64}
                  s_load_dword s32, s[20:21], 0
                  s_add_u32 s6, s24, {WS_END-64}
                  s_addc_u32 s7, s25, 0
                  s_load_dword s32, s[6:7], 0
                  s_waitcnt lgkmcnt(0)
                  L_pc_notlb:""")
        A(f"""{"" if ctl else "s_branch L_vdone"}
              s_mov_b64 exec, 0xff
              L_pc_loop:
              ds_read_b128 v[8:11], v99 offset:16
              s_waitcnt lgkmcnt(0)
              v_min_u32 v12, v8, v9
              v_min3_u32 v12, v12, v10, v11
              v_max_u32 v8, v8, v9
              v_max3_u32 v8, v8, v10, v11
              v_readfirstlane_b32 s{sT0}, v12
              v_readfirstlane_b32 s{sT1}, v8
              s_cmp_lt_u32 s{sT0}, s{sMY}
              s_cbranch_scc1 L_pc_nopub
              s_mov_b32 s{sMY}, 1000
              s_mov_b64 exec, s[{sM1}:{sM1+1}]
              buffer_store_dword v57, v59, {srd(SWS)}, s{sTK} offen {POL[tp]}
              s_mov_b64 exec, 0xff
              L_pc_nopub:
              s_cmp_ge_u32 s{sT0}, {min(59, P0+NK+1)}
              s_cbranch_scc1 L_pc_out
              s_cmp_le_u32 s{sc}, s{sK}
              s_cbranch_scc1 L_pc_wait
              s_mov_b32 s{sK}, s{sc}
              s_cmp_ge_u32 s{sK}, {PF}
              s_cselect_b32 s{sT1}, {cm2}, {cm}
              s_andn2_b32 s{sT1}, s{sK}, s{sT1}
              s_sub_u32 s{sT1}, s{sT1}, {P0-1}
              s_mul_i32 s{sT1}, s{sT1}, {TS}
              s_add_u32 s{sT1}, s{sT1}, {WS_TK}
              s_load_dwordx8 s[{sH}:{sH+7}], s[24:25], s{sT1}
              s_lshl_b32 s{sT0}, s{sK}, 7
              s_add_u32 s{sT0}, s{sT0}, s{sLB}
              s_add_u32 s{sT1}, s{sT0}, s{sCU}
              s_load_dwordx2 s[12:13], s[24:25], s{sT1}""")
        if GT:
            A(f"""s_mov_b32 s{sIT}, 0
                  s_cmp_lt_u32 s{sK}, {PGB}
                  s_cbranch_scc1 L_pc_nog
                  s_lshl_b32 s{sT3}, s{sK}, 7
                  s_add_u32 s{sT3}, s{sT3}, s{sT2}
                  s_add_u32 s{sT1}, s{sT3}, s{sCU}
                  s_load_dwordx8 s[28:35], s[24:25], s{sT1}
                  s_mov_b64 exec, 3
                  buffer_store_dword v57, v55, {srd(SWS)}, s{sT3} offen
                  s_mov_b64 exec, 0xff
                  s_waitcnt lgkmcnt(0)""")
            for i in range(8): A(f"s_cmp_eq_u32 s{28+i}, s{sTAG}\ns_addc_u32 s{sIT}, s{sIT}, 0")
            A(f"s_cmp_ge_u32 s{sIT}, {GT}\ns_cselect_b32 s{sIT}, {GB}, 0\nL_pc_nog:")
        A(f"""s_sub_u32 s{sT1}, s{sK}, {DD_+1-slo}
              s_waitcnt lgkmcnt(0)""")
        for i in range(slo, shi + 1): A(f"s_cmp_eq_u32 s{sH+i}, s{sTAG}\ns_addc_u32 s{sT1}, s{sT1}, 0")
        A(f"""s_cmp_eq_u32 s13, s{sTAG}
              s_cselect_b32 s12, s12, 0
              s_cmp_gt_u32 s{sT1}, s12
              s_cselect_b32 s{sT1}, s{sT1}, s12
              v_mov_b32 v8, s{sT1}
              {f"v_add_u32 v8, s{sIT}, v8" if GT else ""}
              v_mov_b32 v9, v8
              ds_write2_b64 v99, v[8:9], v[8:9] offset0:0 offset1:1
              s_cbranch_scc0 L_pc_loop
              s_sub_u32 s{sT0}, s{sT0}, {7*128}
              s_mov_b64 exec, 0xffff
              v_mov_b32 v56, s{sT1}
              buffer_store_dwordx2 v[56:57], v58, {srd(SWS)}, s{sT0} offen
              s_mov_b64 exec, 0xff
              s_branch L_pc_loop
              L_pc_wait:
              s_sleep {slp}
              s_branch L_pc_loop
              L_pc_out:
              s_mov_b64 exec, -1""")
        if wl:
            assert ctl
            if wl == 2:
                A(f"""L_pc_w60:
                      ds_read_b128 v[8:11], v99 offset:16
                      s_waitcnt lgkmcnt(0)
                      v_min_u32 v8, v8, v9
                      v_min3_u32 v8, v8, v10, v11
                      v_cmp_gt_u32 vcc, 60, v8
                      s_cbranch_vccnz L_pc_w60""")
            wo_dma(0)
        A("s_branch L_vdone")

    A(".p2align 3\nL_aux:")
    if noaux:
        A(f"s_mov_b32 s{SWS}, s24\ns_mov_b32 s{SWS+1}, s25\ns_mov_b32 s{SWS+2}, 0x30000000\ns_mov_b32 s{SWS+3}, 0x20000")
        A(f"v_lshlrev_b32 v2, 2, v0\nv_lshrrev_b32 v3, 3, v0\ns_mov_b64 exec, 0xffffff\nds_write_b32 v2, v3 offset:{L_FLAG}\ns_mov_b64 exec, -1")
        A("s_waitcnt vmcnt(0) lgkmcnt(0)\ns_barrier\ns_barrier\ns_barrier\ns_barrier\ns_barrier\ns_barrier\ns_branch L_fin")
    A(f"""v_lshrrev_b32 v1, 4, v0
          v_and_b32 v2, 15, v0
          s_lshl_b32 s{sOUTC}, s{sOUTC}, 6""")
    for r, lo, n in ((SWS, 24, WSN), (SOUT, 20, 5120)) + (() if ew else ((SWO, 12, 7864320), (SW2, 18, 1966080))):
        A(f"s_mov_b32 s{r}, s{lo}\ns_mov_b32 s{r+1}, s{lo+1}\ns_mov_b32 s{r+2}, {n}\ns_mov_b32 s{r+3}, 0x20000")
    masks()
    A(f"""s_mov_b32 s{sL2E}, {f2u(1.4426950408889634):#x}
          v_mov_b32 v4, 0x3f803f80
          v_mov_b32 v76, 0
          v_mul_u32_u24 v70, 1312, v1
          v_lshl_add_u32 v70, v2, 4, v70
          s_mul_i32 s{sXCC}, s{sXCC}, 0x01010101
          s_and_b32 s{sT0}, s{sLID}, 0xe0
          s_add_u32 s22, s22, s{sT0}
          s_addc_u32 s23, s23, 0
          s_waitcnt vmcnt({(1 if pre else 0) + ev})""")
    stamp(1)
    A("; ---- LayerNorm: lane (b = l>>4, c = l&15) holds 40 elements of row b; every rounding of the bf16 reference is kept")
    for i in range(20): A(f"v_dot2c_f32_bf16 v76, v{X+i}, v4")
    for i in range(20): A(f"v_lshlrev_b32 v{F+2*i}, 16, v{X+i}\nv_and_b32 v{F+2*i+1}, 0xffff0000, v{X+i}")
    def red16(r):
        for m in ("quad_perm:[1,0,3,2]", "quad_perm:[2,3,0,1]", "row_half_mirror", "row_ror:8"):
            A(f"s_nop 1\nv_add_f32_dpp v{r}, v{r}, v{r} {m} row_mask:0xf bank_mask:0xf")
    if he == 2: A(f"s_load_dwordx8 s[{sH}:{sH+7}], s[22:23], 0")
    red16(76)
    A(f"v_mul_f32 v76, {f2u(1.0/640):#x}, v76")
    A("v_mov_b32 v72, 0\nv_mov_b32 v73, 0")
    for i in range(20):
        A(f"v_pk_add_f32 v[74:75], v[{F+2*i}:{F+2*i+1}], v[76:77] op_sel_hi:[1,0] neg_lo:[0,1] neg_hi:[0,1]")
        A("v_pk_fma_f32 v[72:73], v[74:75], v[74:75], v[72:73]")
    A("v_add_f32 v72, v72, v73")
    red16(72)
    A(f"""v_mul_f32 v72, {f2u(1.0/640):#x}, v72
          v_cvt_pk_bf16_f32 v72, 0, v72
          v_add_f32 v72, {f2u(1e-5):#x}, v72
          v_cvt_pk_bf16_f32 v72, 0, v72
          v_sqrt_f32 v72, v72
          v_cvt_pk_bf16_f32 v76, 0, v76
          v_cvt_pk_bf16_f32 v72, 0, v72
          v_rcp_f32 v72, v72""")
    if he == 1: A(f"s_load_dwordx8 s[{sH}:{sH+7}], s[22:23], 0")
    for i in range(20):
        A(f"v_pk_add_f32 v[{F+2*i}:{F+2*i+1}], v[{F+2*i}:{F+2*i+1}], v[76:77] op_sel_hi:[1,0] neg_lo:[0,1] neg_hi:[0,1]")
        A(f"v_cvt_pk_bf16_f32 v{X+i}, v{F+2*i}, v{F+2*i+1}")
    for i in range(20):
        A(f"v_lshlrev_b32 v{F+2*i}, 16, v{X+i}\nv_and_b32 v{F+2*i+1}, 0xffff0000, v{X+i}")
        A(f"v_pk_mul_f32 v[{F+2*i}:{F+2*i+1}], v[{F+2*i}:{F+2*i+1}], v[72:73] op_sel_hi:[1,0]")
        A(f"v_cvt_pk_bf16_f32 v{X+i}, v{F+2*i}, v{F+2*i+1}")
        if i % 4 == 3: A(f"ds_write_b128 v70, v[{X+i-3}:{X+i}] offset:{L_XN+256*(i//4)}")
    AF = 28
    A(f"""v_and_b32 v3, 3, v0
          v_mul_u32_u24 v71, 1312, v3
          v_lshl_add_u32 v71, v1, 3, v71
          s_mul_i32 s{sT0}, s{sKH}, 640
          v_add_u32 v71, s{sT0}, v71
          s_waitcnt {"vmcnt(0) " if ev else ""}lgkmcnt(0)""")
    if ev:
        A("; tag = hash of the first word found in ws, with low 4 bits that none of the 8 words found there has")
        A(f"v_readlane_b32 s{sTAG}, v100, 0")
        for e in range(4): A(f"v_and_b32 v{100+e}, 15, v{100+e}\nv_lshlrev_b32 v{100+e}, v{100+e}, 1")
        A("v_or3_b32 v100, v100, v101, v102\nv_or_b32 v100, v100, v103")
    mktag()
    if ev:
        A(f"""v_readlane_b32 s{sT0}, v100, 0
              v_readlane_b32 s{sT1}, v100, 1
              s_and_b32 s{sT2}, s{sTAG}, 15
              s_or_b32 s{sT0}, s{sT0}, s{sT1}
              s_mul_i32 s{sT0}, s{sT0}, 0x10001
              s_lshr_b32 s{sT0}, s{sT0}, s{sT2}
              s_ff0_i32_b32 s{sT0}, s{sT0}
              s_add_u32 s{sT0}, s{sT0}, s{sT2}
              s_and_b32 s{sT0}, s{sT0}, 15
              s_andn2_b32 s{sTAG}, s{sTAG}, 15
              s_or_b32 s{sTAG}, s{sTAG}, s{sT0}""")
    for s in range(10): A(f"ds_read2_b64 v[{AF+4*s}:{AF+4*s+3}], v71 offset0:{8*s} offset1:{8*s+4}")
    A(f"""v_lshrrev_b32 v68, 2, v0
          v_lshlrev_b32 v68, 7, v68
          v_lshl_add_u32 v68, v3, 3, v68
          v_bfe_u32 v69, v0, 3, 2""")
    for t in range(4): A(f"v_xor_b32 v72, {t}, v69\nv_lshl_add_u32 v{4+t}, v72, 5, v68")
    def hello():
        if not he: A(f"s_load_dwordx8 s[{sH}:{sH+7}], s[22:23], 0")
        A("s_waitcnt lgkmcnt(0)")
        for i in range(8): A(f"s_xor_b32 s{sH+i}, s{sH+i}, s{sXCC}")
        for i in range(1, 4): A(f"s_or_b64 s[{sH}:{sH+1}], s[{sH}:{sH+1}], s[{sH+2*i}:{sH+2*i+1}]")
        A(f"s_cselect_b32 s{sFAST}, 0, {min(fast, 1)}")
        if fast == 2: A(f"s_and_b32 s{sFAST}, s{sFAST}, s{sJ}")
    hello()
    A(f"""s_mul_i32 s{sT0}, s{sKH}, 30720
          s_add_u32 s{sT0}, s{sT0}, s{sOUTC}
          s_lshl_b32 s{sT0}, s{sT0}, 2
          s_add_u32 s{sOFF}, s{sT0}, {WS_QP}""")
    if qw:
        A("; (speed only) untagged first write of our slots: their lines are then in L2 and early polls hit")
        A(f"""s_min_u32 s{sT0}, s{sFAST}, s{sVAL}
              s_cmp_eq_u32 s{sT0}, 0
              s_cbranch_scc1 L_noqw
              v_not_b32 v24, s{sTAG}
              v_mul_u32_u24 v2, 30720, v1
              v_and_b32 v3, 15, v0
              v_lshl_add_u32 v2, v3, 4, v2
              v_mov_b32 v25, v24
              v_mov_b32 v26, v24
              v_mov_b32 v27, v24
              buffer_store_dwordx4 v[24:27], v2, {srd(SWS)}, s{sOFF} offen
              L_noqw:""")
    if stamps: A(f"s_mov_b32 s{sST+15}, s{sFAST}")
    stamp(2)
    A("s_barrier")
    stamp(3)
    D, BR = 8, 72
    def rd(hs):
        s, p = hs // 2, hs % 2
        for tt in range(2):
            t = 2 * p + tt; r = BR + (hs % 3) * 8 + tt * 4
            for hf in range(2):
                A(f"ds_read_b64_tr_b16 v[{r+2*hf}:{r+2*hf+1}], v{4+t} offset:{L_T2+4096*s+2048*hf}")
    rd(0); rd(1)
    for hs in range(20):
        s, p = hs // 2, hs % 2
        if hs + 2 < 20: rd(hs + 2)
        A(f"s_waitcnt lgkmcnt({4*min(2, 19-hs)})")
        for tt in range(2):
            t = 2 * p + tt; r = BR + (hs % 3) * 8 + tt * 4
            c = "0" if s == 0 else f"v[{D+4*t}:{D+4*t+3}]"
            A(f"v_mfma_f32_16x16x32_bf16 v[{D+4*t}:{D+4*t+3}], v[{AF+4*s}:{AF+4*s+3}], v[{r}:{r+3}], {c}")
    A(f"""s_nop 0
          s_and_b32 s{sT8}, s{sTAG}, 15
          v_lshlrev_b32 v70, 3, v0
          v_lshlrev_b32 v66, 2, v0
          v_mov_b32 v28, s{sTAG}
          v_mov_b32 v29, 15
          s_cmp_eq_u32 s{sVAL}, 0
          s_cbranch_scc1 L_nopub""")
    for r in range(4):
        o = 24 + r
        A(f"""v_cndmask_b32 v{o}, v{D+r}, v{D+4+r}, s[{sM1}:{sM1+1}]
              v_cndmask_b32 v{o}, v{o}, v{D+8+r}, s[{sM2}:{sM2+1}]
              v_cndmask_b32 v{o}, v{o}, v{D+12+r}, s[{sM3}:{sM3+1}]
              v_bfi_b32 v{o}, v29, v28, v{o}""")
    def qstores(pol):
        for r in range(4):
            A(f"""buffer_store_dword v{24+r}, v66, {srd(SWS)}, s{sOFF} offen {pol}
                  s_add_u32 s{sOFF}, s{sOFF}, 30720""")
    def rehello():
        l = A.lab("rh")
        A(f"""s_cmp_lg_u32 s{sFAST}, 0
              s_cbranch_scc1 {l}
              v_and_b32 v2, 7, v0
              v_lshlrev_b32 v2, 2, v2
              global_load_dword v3, v2, s[22:23] sc1
              s_waitcnt vmcnt(0)
              v_cmp_ne_u32 vcc, s{sXCC}, v3
              s_cmp_eq_u64 vcc, 0
              s_cselect_b32 s{sFAST}, {min(fast, 1)}, 0""")
        if fast == 2: A(f"s_and_b32 s{sFAST}, s{sFAST}, s{sJ}")
        A(f"{l}:")
    rehello()
    A(f"s_cmp_eq_u32 s{sFAST}, 0\ns_cbranch_scc1 L_qslow")
    qstores("")
    A("s_branch L_nopub\nL_qslow:")
    qstores("sc1")
    A("L_nopub:")
    stamp(4)

    def gather4(ldsoff, relu, sleep):
        GB = 100
        lp = A.lab("g4"); ex = A.lab("g4x")
        for i in range(1, 8): A(f"s_add_u32 s{sH+i}, s{sOFF}, {30720*i}")
        so = [sOFF] + [sH + i for i in range(1, 8)]
        A(f"s_mov_b32 exec_hi, 0xffff\ns_mov_b32 s{sSPIN}, {spin}\n{lp}:")
        for i in range(8): A(f"buffer_load_dwordx4 v[{GB+4*i}:{GB+4*i+3}], v94, {srd(SWS)}, s{so[i]} offen sc1")
        A(f"s_sub_u32 s{sSPIN}, s{sSPIN}, 1\ns_waitcnt vmcnt(0)")
        for e in range(32): A(f"v_xor_b32 v{GB+e}, s{sT8}, v{GB+e}")
        A(f"v_or_b32 v2, v{GB}, v{GB+1}")
        for e in range(2, 32, 2): A(f"v_or3_b32 v2, v2, v{GB+e}, v{GB+e+1}")
        A(f"""s_nop 1
              v_or_b32_dpp v2, v2, v2 quad_perm:[1,0,3,2] row_mask:0xf bank_mask:0xf
              s_cbranch_scc1 {ex}
              s_nop 0
              v_or_b32_dpp v2, v2, v2 quad_perm:[2,3,0,1] row_mask:0xf bank_mask:0xf
              v_and_b32 v2, 15, v2
              v_cmp_ne_u32 vcc, 0, v2
              s_and_b64 exec, exec, vcc""")
        if sleep: A(f"s_cbranch_execz {ex}\ns_sleep {sleep}\ns_branch {lp}")
        else: A(f"s_cbranch_execnz {lp}")
        A(f"{ex}:\ns_mov_b32 exec_lo, -1\ns_mov_b32 exec_hi, 0xffff")
        for b in range(4):
            r = GB + 4 * b
            for e in (0, 2): A(f"v_pk_add_f32 v[{r+e}:{r+e+1}], v[{r+e}:{r+e+1}], v[{r+16+e}:{r+17+e}]")
            if relu:
                for e in range(4): A(f"v_max_f32 v{r+e}, 0, v{r+e}")
            A(f"v_cvt_pk_bf16_f32 v{r}, v{r}, v{r+1}\nv_cvt_pk_bf16_f32 v{r+1}, v{r+2}, v{r+3}")
            A(f"ds_write_b64 v70, v[{r}:{r+1}] offset:{ldsoff+416*b}")
        A("s_mov_b64 exec, -1")

    A(f"""v_lshlrev_b32 v69, 5, v0
          v_lshlrev_b32 v94, 4, v0
          s_mul_i32 s{sOFF}, s{sHD}, 768
          s_add_u32 s{sOFF}, s{sOFF}, {WS_QP}
          v_mov_b32 v99, {L_FLAG}
          v_mov_b32 v32, 0
          v_mov_b32 v33, 0
          ds_write2_b64 v99, v[32:33], v[32:33] offset0:0 offset1:1
          ds_write2_b64 v99, v[32:33], v[32:33] offset0:2 offset1:3
          ds_write2_b64 v99, v[32:33], v[32:33] offset0:4 offset1:5
          ds_write2_b64 v99, v[32:33], v[32:33] offset0:6 offset1:7
          ds_write2_b64 v99, v[32:33], v[32:33] offset0:8 offset1:9
          ds_write2_b64 v99, v[32:33], v[32:33] offset0:10 offset1:11
          ds_write_b32 v99, v28 offset:96""")
    gather4(L_Q, False, 0)
    A("s_waitcnt lgkmcnt(0)")
    stamp(5)
    A("s_barrier")

    if not ew: dma_regs()
    A(f"""v_lshrrev_b32 v2, 2, v0
          v_mul_u32_u24 v2, 160, v2
          v_and_b32 v3, 3, v0
          v_lshl_add_u32 v65, v3, 3, v2
          v_add_u32 v65, {L_W2}, v65""")
    BW = 100
    def tile_frags():
        n = 0
        for t in range(5):
            for s in range(6):
                r = BW + (s * 5 + t) * 4
                for hf in range(2):
                    if n >= 15: A("s_waitcnt lgkmcnt(14)")
                    A(f"ds_read_b64_tr_b16 v[{r+2*hf}:{r+2*hf+1}], v65 offset:{5120*s+2560*hf+32*t}")
                    n += 1
        A("s_waitcnt lgkmcnt(0)")

    A(f"s_cmp_lt_u32 s{sJ}, 6\ns_cbranch_scc1 L_noffn2")
    w2_par()
    if not ew: w2_dma(tw)
    A(f"""s_mul_i32 s{sOFF}, s{sT3}, 768
          s_add_u32 s{sOFF}, s{sOFF}, {WS_QP + 6144*4}""")
    gather4(L_H, True, 4)
    A(f"""v_and_b32 v3, 3, v0
          v_mul_u32_u24 v71, 416, v3
          v_lshl_add_u32 v71, v1, 3, v71
          v_add_u32 v71, {L_H}, v71
          s_waitcnt vmcnt(0) lgkmcnt(0)""")
    for s in range(6): A(f"ds_read2_b64 v[{28+4*s}:{28+4*s+3}], v71 offset0:{8*s} offset1:{8*s+4}")
    A("s_waitcnt lgkmcnt(0)")
    tile_frags()
    for s in range(6):
        for t in range(5):
            c = "0" if s == 0 else f"v[{8+4*t}:{8+4*t+3}]"
            r = BW + (s * 5 + t) * 4
            A(f"v_mfma_f32_16x16x32_bf16 v[{8+4*t}:{8+4*t+3}], v[{28+4*s}:{28+4*s+3}], v[{r}:{r+3}], {c}")
    A(f"""s_mul_i32 s{sOFF}, s{sT3}, 10240
          s_mul_i32 s{sT0}, s{sT2}, 1280
          s_add_u32 s{sOFF}, s{sOFF}, s{sT0}
          s_add_u32 s{sOFF}, s{sOFF}, {WS_YP}
          v_mov_b32 v3, 15
          s_nop 7""")
    for t in range(5):
        o = 28 + 2 * t
        A(f"""v_cndmask_b32 v{o}, v{8+4*t}, v{9+4*t}, s[{sM1}:{sM1+1}]
              v_cndmask_b32 v{o}, v{o}, v{10+4*t}, s[{sM2}:{sM2+1}]
              v_cndmask_b32 v{o}, v{o}, v{11+4*t}, s[{sM3}:{sM3+1}]
              v_bfi_b32 v{o}, v3, s{sTAG}, v{o}
              buffer_store_dword v{o}, v66, {srd(SWS)}, s{sOFF} offen offset:{256*t} sc1""")
    A("L_noffn2:")

    def red4():
        A(f"""s_nop 1
              v_permlane32_swap_b32 v8, v10
              v_permlane32_swap_b32 v9, v11
              v_add_f32 v8, v8, v10
              v_add_f32 v9, v9, v11
              s_nop 1
              v_permlane16_swap_b32 v8, v9
              v_add_f32 v8, v8, v9
              s_nop 1
              v_add_f32_dpp v8, v8, v8 row_ror:8 row_mask:0xf bank_mask:0xf
              s_nop 1
              v_add_f32_dpp v8, v8, v8 row_ror:4 row_mask:0xf bank_mask:0xf""")
    def fpoll(loads, sleep):
        lp = A.lab("fp"); ex = A.lab("fpx")
        n = len(loads)
        A(f"s_mov_b32 s{sSPIN}, {spin}\n{lp}:")
        for l in loads: A(l)
        A(f"s_sub_u32 s{sSPIN}, s{sSPIN}, 1\ns_waitcnt vmcnt(0)")
        if n == 1:
            for e in range(4): A(f"v_xor_b32 v{8+e}, s{sT8}, v{12+e}")
            A("v_or3_b32 v2, v8, v9, v10\nv_or_b32 v2, v2, v11\ns_nop 1")
        else:
            for e in range(8): A(f"v_xor_b32 v{12+e}, s{sT8}, v{12+e}")
            A("""v_or3_b32 v2, v12, v13, v14
                 v_or3_b32 v2, v2, v15, v16
                 v_or3_b32 v2, v2, v17, v18
                 v_or_b32 v2, v2, v19
                 v_pk_add_f32 v[8:9], v[12:13], v[16:17]
                 v_pk_add_f32 v[10:11], v[14:15], v[18:19]""")
        A(f"""v_or_b32_dpp v2, v2, v2 quad_perm:[1,0,3,2] row_mask:0xf bank_mask:0xf
              s_cbranch_scc1 {ex}
              s_nop 0
              v_or_b32_dpp v2, v2, v2 quad_perm:[2,3,0,1] row_mask:0xf bank_mask:0xf
              v_and_b32 v2, 15, v2
              v_cmp_ne_u32 vcc, 0, v2
              s_and_b64 exec, exec, vcc""")
        if sleep: A(f"s_cbranch_execz {ex}\ns_sleep {sleep}\ns_branch {lp}")
        else: A(f"s_cbranch_execnz {lp}")
        A(f"{ex}:")
    sR4 = sCOLB
    sTHR, sOPW, sOPR = 18, sT2, sT3
    A(f"""s_mul_i32 s{sT0}, s{sG}, 5
          s_add_u32 s{sT0}, s{sT0}, s{sJ}
          s_lshl_b32 s{sR4}, s{sT0}, 6
          s_and_b32 s{sT1}, s{sT0}, 3
          s_mul_i32 s{sT1}, s{sT1}, 40
          s_lshr_b32 s{sT0}, s{sT0}, 2
          s_add_u32 s{sT0}, s{sT0}, s{sT1}
          v_lshrrev_b32 v2, 3, v0
          v_lshlrev_b32 v89, 4, v2
          v_lshrrev_b32 v2, 2, v0
          v_mul_u32_u24 v92, 10240, v2
          v_and_b32 v3, 3, v0
          v_lshl_add_u32 v92, v3, 4, v92
          v_lshl_add_u32 v93, v3, 2, v1
          v_lshlrev_b32 v93, 1, v93
          s_lshl_b32 s{sT0}, s{sT0}, 5
          v_add_u32 v93, s{sT0}, v93
          v_mov_b32 v87, v94
          v_lshlrev_b32 v88, 7, v1
          v_mov_b32 v41, s{sTAG}
          v_mov_b32 v43, s{sTAG}""")
    def wait_prog():
        l = A.lab("wp"); x = A.lab("wpx")
        A(f"""{l}:
              ds_read_b128 v[8:11], v99 offset:16
              s_waitcnt lgkmcnt(0)
              v_min_u32 v8, v8, v9
              v_min3_u32 v8, v8, v10, v11
              v_cmp_le_u32 vcc, s{sTHR}, v8
              s_cbranch_vccnz {x}
              s_sleep 4
              s_branch {l}
              {x}:""")
    def store2(ins):
        a = A.lab("sl"); b = A.lab("sd")
        A(f"s_cbranch_scc1 {a}\n{ins}\ns_branch {b}\n{a}:\n{ins} sc1\n{b}:")
    A(f"s_cmp_ge_u32 s{sJ}, 5\ns_cbranch_scc1 L_nogate\ns_mov_b32 s{sTHR}, {PG}")
    wait_prog()
    A(f"""buffer_load_ushort v91, v93, {srd(SX)}, 0 offen
          s_add_u32 s{sOFF}, s{sR4}, {WS_YP}""")
    A("v_mov_b32 v8, 0\nv_mov_b32 v9, 0\nv_mov_b32 v10, 0\nv_mov_b32 v11, 0\ns_mov_b32 exec_hi, 0")
    fpoll([f"buffer_load_dwordx4 v[12:15], v92, {srd(SWS)}, s{sOFF} offen sc1"], 8)
    A("s_mov_b64 exec, -1")
    red4()
    A(f"""v_cvt_pk_bf16_f32 v8, 0, v8
          v_mul_f32 v9, s{sL2E}, v8
          v_exp_f32 v9, -v9
          v_lshlrev_b32 v91, 16, v91
          v_add_f32 v9, 1.0, v9
          v_rcp_f32 v9, v9
          s_nop 0
          v_mul_f32 v8, v8, v9
          v_cvt_pk_bf16_f32 v90, 0, v8
          L_nogate:""")
    stamp(6)
    rehello()
    A(f"""s_mov_b32 s{sTHR}, 24
          s_lshl_b32 s{sOPR}, s{sG}, 9
          s_add_u32 s{sOPR}, s{sOPR}, {WS_ML}
          s_lshl_b32 s{sOPW}, s{sJ}, 4
          s_add_u32 s{sOPW}, s{sOPW}, s{sOPR}
          s_mov_b32 s{sM1}, 0x00010001
          s_mov_b32 s{sM1+1}, 0x00000001
          s_mov_b32 s{sM2}, 0x00ffffff
          s_mov_b32 s{sM2+1}, 0
          L_stats:""")
    wait_prog()
    for w in range(4):
        for h in range(2): A(f"ds_read_b128 v[{8+8*w+4*h}:{11+8*w+4*h}], v69 offset:{L_SC+2048*w+16*h}")
    A("s_waitcnt lgkmcnt(0)\nv_max_f32 v40, v8, v9")
    for i in range(1, 16): A(f"v_max3_f32 v40, v40, v{8+2*i}, v{9+2*i}")
    R16 = ("quad_perm:[1,0,3,2]", "quad_perm:[2,3,0,1]", "row_half_mirror", "row_ror:8")
    for m in R16: A(f"s_nop 1\nv_max_f32_dpp v40, v40, v40 {m} row_mask:0xf bank_mask:0xf")
    for i in range(32): A(f"v_sub_f32 v{8+i}, v{8+i}, v40")
    for i in range(32): A(f"v_exp_f32 v{8+i}, v{8+i}")
    A("v_add_f32 v42, v8, v9")
    for i in range(2, 32): A(f"v_add_f32 v42, v42, v{8+i}")
    red16(42)
    A(f"s_mov_b64 exec, s[{sM1}:{sM1+1}]\ns_cmp_eq_u32 s{sFAST}, 0")
    store2(f"buffer_store_dwordx4 v[40:43], v88, {srd(SWS)}, s{sOPW} offen")
    A(f"s_mov_b64 exec, -1\ns_add_u32 s{sTHR}, s{sTHR}, 3")
    wait_prog()
    A(f"s_mov_b64 exec, s[{sM2}:{sM2+1}]")
    poll([f"buffer_load_dwordx4 v[44:47], v94, {srd(SWS)}, s{sOPR} offen sc1"], [45, 47], 4)
    A("s_mov_b64 exec, -1")
    R8 = R16[:3]
    A(f"v_max_f32_dpp v48, v44, v44 {R8[0]} row_mask:0xf bank_mask:0xf")
    for m in R8[1:]: A(f"s_nop 1\nv_max_f32_dpp v48, v48, v48 {m} row_mask:0xf bank_mask:0xf")
    A("v_sub_f32 v44, v44, v48\nv_exp_f32 v44, v44\ns_nop 0\nv_mul_f32 v44, v44, v46")
    for m in R8: A(f"s_nop 1\nv_add_f32_dpp v44, v44, v44 {m} row_mask:0xf bank_mask:0xf")
    A(f"""v_log_f32 v49, v44
          v_mov_b32 v50, 1
          s_mov_b64 exec, s[{sM2}:{sM2+1}]
          ds_write_b64 v89, v[48:49] offset:{L_FLAG+32}
          ds_write_b32 v89, v50 offset:{L_FLAG+40}
          s_mov_b64 exec, -1
          s_mov_b32 s{sM1}, 0
          s_mov_b32 s{sM1+1}, 0x00010000
          s_mov_b32 s{sM2}, 0xff000000
          s_add_u32 s{sTHR}, s{sTHR}, 5
          s_cmp_lt_u32 s{sTHR}, 40
          s_cbranch_scc1 L_stats""")
    if not ew: wo_dma(tw)
    A(f"""s_mul_i32 s{sOPR}, s{sG}, 24576
          s_add_u32 s{sOPR}, s{sOPR}, {WS_OP}
          s_mul_i32 s{sOPW}, s{sJ}, 768
          s_add_u32 s{sOPW}, s{sOPW}, s{sOPR}
          v_lshrrev_b32 v2, 3, v0
          v_and_b32 v3, 7, v0
          v_mul_u32_u24 v85, 768, v2
          v_lshl_add_u32 v85, v3, 4, v85
          v_and_b32 v3, 3, v0
          v_bfe_u32 v4, v0, 2, 1
          v_lshl_add_u32 v3, v3, 1, v4
          v_lshl_add_u32 v84, v2, 3, v3
          v_lshlrev_b32 v84, 3, v84
          v_lshl_add_u32 v2, v1, 1, v2
          v_mul_u32_u24 v86, 528, v2
          v_lshl_add_u32 v86, v3, 3, v86
          v_add_u32 v86, {L_A + 528}, v86""")
    if pt3 == 2:
        A("; (speed only) untagged first write of our last record: its lines are then in L2 and the neighbours' polls hit")
        A(f"""s_cmp_eq_u32 s{sFAST}, 0
              s_cbranch_scc1 L_batch
              s_add_u32 s{sT1}, s{sOPW}, {3*6144}
              v_not_b32 v45, v41
              v_not_b32 v47, v41
              s_mov_b32 exec_hi, 0xffff
              buffer_store_dwordx4 v[44:47], v94, {srd(SWS)}, s{sT1} offen
              s_mov_b32 exec_hi, -1""")
    if pt3 == 1:
        A("; (first touch of the lines of our last record: brings them into L2 so that the neighbours' polls hit)")
        A(f"""s_add_u32 s{sT1}, s{sOPW}, {3*6144}
              v_lshlrev_b32 v2, 7, v0
              s_mov_b64 exec, 63
              buffer_load_dword v98, v2, {srd(SWS)}, s{sT1} offen sc1
              s_mov_b64 exec, -1""")
    A("L_batch:")
    wait_prog()
    A("L_publish:\ns_mov_b32 exec_hi, 0xffff")
    for w in range(4): A(f"ds_read_b128 v[{8+4*w}:{11+4*w}], v87 offset:{L_PART+768*w}")
    A(f"""s_cmp_eq_u32 s{sFAST}, 0
          s_waitcnt lgkmcnt(2)
          v_pk_add_f32 v[8:9], v[8:9], v[12:13]
          v_pk_add_f32 v[10:11], v[10:11], v[14:15]
          s_waitcnt lgkmcnt(0)
          v_pk_add_f32 v[16:17], v[16:17], v[20:21]
          v_pk_add_f32 v[18:19], v[18:19], v[22:23]
          v_pk_add_f32 v[8:9], v[8:9], v[16:17]
          v_pk_add_f32 v[10:11], v[10:11], v[18:19]
          v_cvt_pk_bf16_f32 v40, v8, v9
          v_cvt_pk_bf16_f32 v42, v10, v11""")
    store2(f"buffer_store_dwordx4 v[40:43], v94, {srd(SWS)}, s{sOPW} offen")
    A(f"""s_mov_b32 exec_hi, -1
          s_cmp_eq_u32 s{sTHR}, 64
          s_cbranch_scc1 L_last
          s_add_u32 s{sOPW}, s{sOPW}, 6144
          v_add_u32 v87, 3072, v87
          s_add_u32 s{sTHR}, s{sTHR}, {GO}""")
    wait_prog()
    A(f"s_add_u32 s{sT0}, s{sOPR}, 3072\ns_add_u32 s{sT1}, s{sOPR}, 6144\ns_mov_b32 exec_hi, 0xffff")
    if not pt3:
        A("; (first touch of the next batch's lines: brings them into L2 so that its polls hit)")
        A(f"v_lshlrev_b32 v2, 7, v0\nbuffer_load_dword v98, v2, {srd(SWS)}, s{sT1} offen sc1")
    ld = []; tg = []
    for r in range(8):
        ld.append(f"buffer_load_dwordx4 v[{8+4*r}:{11+4*r}], v94, {srd(SWS)}, s{sOPR if r < 4 else sT0} offen offset:{768*(r%4)} sc1"); tg += [9 + 4 * r, 11 + 4 * r]
    poll(ld, tg, 2)
    A("s_mov_b32 exec_lo, -1\ns_mov_b32 exec_hi, 0xffff")
    for r in range(8):
        a = 8 + 4 * r
        A(f"v_and_b32 v{a+1}, 0xffff0000, v{a}\nv_lshlrev_b32 v{a}, 16, v{a}\nv_and_b32 v{a+3}, 0xffff0000, v{a+2}\nv_lshlrev_b32 v{a+2}, 16, v{a+2}")
        if r: A(f"v_pk_add_f32 v[8:9], v[8:9], v[{a}:{a+1}]\nv_pk_add_f32 v[10:11], v[10:11], v[{a+2}:{a+3}]")
    A(f"""v_cvt_pk_bf16_f32 v48, v8, v9
          v_cvt_pk_bf16_f32 v49, v10, v11
          ds_write_b64 v84, v[48:49] offset:{L_A}
          s_mov_b32 exec_hi, -1
          v_add_u32 v84, 2112, v84
          s_add_u32 s{sOPR}, s{sOPR}, 6144
          s_add_u32 s{sTHR}, s{sTHR}, {8-GO}
          s_cmp_lt_u32 s{sTHR}, 64
          s_cbranch_scc1 L_batch
          s_add_u32 s{sOFF}, s{sR4}, {WS_SP}""")
    A(f"s_add_u32 s{sH+1}, s{sOFF}, 163840")
    A("s_waitcnt lgkmcnt(0)")
    stamp(7)
    A("s_barrier")
    stamp(8)
    A("s_branch L_publish\nL_last:")
    stamp(9)
    def w1(k):
        for i in range(6): A(f"ds_write2_b32 v86, v{100+24*k+4*i}, v{102+24*k+4*i} offset0:{16*i} offset1:{16*i+1}")
    ppoll(N1, lambda k: [f"buffer_load_dwordx4 v[{100+24*k+4*i}:{103+24*k+4*i}], v85, {srd(SWS)}, s{sOPR} offen offset:{128*i} sc1" for i in range(6)],
          lambda k: [100 + 24 * k + 2 * i + 1 for i in range(12)], w1, lambda: A("s_barrier"), gap1)
    A("s_mov_b64 exec, -1")
    stamp(10)
    A("s_waitcnt lgkmcnt(0)\ns_barrier")
    if xw:
        A("; (speed only) hold the polls back until the four heads next to ours are through as well")
        A(f"""s_cmp_ge_u32 s{sJ}, 5
              s_cbranch_scc1 L_noxw
              v_lshrrev_b32 v2, 3, v0
              v_mul_u32_u24 v3, {24576 - 8*768}, v2
              v_mul_u32_u24 v2, 768, v0
              v_add_u32 v3, v3, v2
              s_and_b32 s{sT0}, s{sG}, 28
              s_mul_i32 s{sT0}, s{sT0}, 24576
              s_add_u32 s{sT0}, s{sT0}, {WS_OP + 3*6144}
              s_mov_b32 exec_hi, 0""")
        poll([f"buffer_load_dword v4, v3, {srd(SWS)}, s{sT0} offen offset:764 sc1"], [4], xw - 1)
        A("s_mov_b64 exec, -1\nL_noxw:")
    if b5 and stamps: A("s_barrier")
    A(f"s_cmp_ge_u32 s{sJ}, {0 if nor4 else 5}\ns_cbranch_scc1 L_fin")
    if b5 and not stamps: A("s_barrier")
    if d2: A(f"s_sleep {d2}")
    stamp(11)
    if at >= 2:
        A(f"""v_lshrrev_b32 v2, 3, v0
              v_mul_u32_u24 v3, 10240, v2
              v_and_b32 v2, 7, v0
              v_lshl_add_u32 v3, v2, 3, v3
              s_mov_b32 s{sSPIN}, {spin}""")
        for i in range(4): A(f"s_add_u32 s{28+i}, s{sOFF}, {81920*i}\ns_mov_b64 s[{4+2*i}:{5+2*i}], -1")
        def iss(k):
            r = 44 + 8 * k
            for i in range(4):
                A(f"""s_or_b64 exec, s[{4+2*i}:{5+2*i}], {at1}
                      v_mov_b32 v{r+2*i}, 0
                      v_mov_b32 v{r+1+2*i}, 0
                      buffer_atomic_or_x2 v[{r+2*i}:{r+1+2*i}], v3, {srd(SWS)}, s{28+i} offen sc0 sc1""")
        for k in range(at):
            iss(k)
            if k < at - 1: A(f"s_sleep {gap2+1}")
        A("L_at:")
        for k in range(at):
            r = 44 + 8 * k
            A(f"s_waitcnt vmcnt({4*(at-1)})")
            for i in range(4):
                A(f"""s_mov_b64 exec, s[{4+2*i}:{5+2*i}]
                      v_xor_b32 v{12+2*i}, s{sT8}, v{r+2*i}
                      v_xor_b32 v{13+2*i}, s{sT8}, v{r+1+2*i}
                      v_bitop3_b32 v2, v{12+2*i}, v{13+2*i}, 15 bitop3:0xa8
                      v_cmp_ne_u32 s[{4+2*i}:{5+2*i}], 0, v2""")
            A(f"""s_or_b64 vcc, s[4:5], s[6:7]
                  s_or_b64 vcc, vcc, s[8:9]
                  s_or_b64 vcc, vcc, s[10:11]
                  s_cbranch_scc0 L_atx""")
            if gap2: A(f"s_sleep {gap2}")
            iss(k)
        A(f"""s_sub_u32 s{sSPIN}, s{sSPIN}, 1
              s_cbranch_scc0 L_at
              L_atx:
              s_mov_b64 exec, -1
              v_pk_add_f32 v[8:9], v[12:13], v[16:17]
              v_pk_add_f32 v[10:11], v[14:15], v[18:19]""")
    elif at:
        A(f"""v_lshrrev_b32 v2, 3, v0
              v_mul_u32_u24 v3, 10240, v2
              v_and_b32 v2, 7, v0
              v_lshl_add_u32 v3, v2, 3, v3
              s_mov_b32 s{sSPIN}, {spin}""")
        for i in range(4): A(f"s_add_u32 s{28+i}, s{sOFF}, {81920*i}\ns_mov_b64 s[{4+2*i}:{5+2*i}], -1")
        A("L_at:")
        for i in range(4):
            l = A.lab("at")
            A(f"""s_mov_b64 exec, s[{4+2*i}:{5+2*i}]
                  s_cbranch_execz {l}
                  v_mov_b32 v{12+2*i}, 0
                  v_mov_b32 v{13+2*i}, 0
                  buffer_atomic_or_x2 v[{12+2*i}:{13+2*i}], v3, {srd(SWS)}, s{28+i} offen sc0 sc1
                  {l}:""")
        A(f"s_mov_b64 exec, -1\ns_sub_u32 s{sSPIN}, s{sSPIN}, 1\ns_waitcnt vmcnt(0)\ns_cbranch_scc1 L_atx")
        for i in range(4):
            A(f"""v_xor_b32 v2, s{sT8}, v{12+2*i}
                  v_bitop3_b32 v2, v2, v{13+2*i}, s{sT8} bitop3:0xf6
                  v_and_b32 v2, 15, v2
                  v_cmp_ne_u32 s[{4+2*i}:{5+2*i}], 0, v2""")
        A(f"""s_or_b64 vcc, s[4:5], s[6:7]
              s_or_b64 vcc, vcc, s[8:9]
              s_or_b64 vcc, vcc, s[10:11]
              s_cbranch_scc0 L_atx
              {f"s_sleep {gap2}" if gap2 else ""}
              s_branch L_at
              L_atx:
              v_pk_add_f32 v[8:9], v[12:13], v[16:17]
              v_pk_add_f32 v[10:11], v[14:15], v[18:19]""")
    elif N2 == 1:
        fpoll([f"buffer_load_dwordx4 v[{12+4*i}:{15+4*i}], v92, {srd(SWS)}, s{(sOFF, sH+1)[i]} offen {POL[fl]}" for i in range(2)], gap2)
    else:
        def lds2(k):
            for i in range(2): A(f"buffer_load_dwordx4 v[{12+8*k+4*i}:{15+8*k+4*i}], v92, {srd(SWS)}, s{(sOFF, sH+1)[i]} offen {POL[fl]}")
        A(f"s_mov_b32 s{sSPIN}, {spin}")
        for k in range(N2):
            lds2(k)
            if k < N2 - 1: A(f"s_sleep {max(gap2, 1)}")
        A("L_f2:")
        for k in range(N2):
            r = 12 + 8 * k
            A(f"s_waitcnt vmcnt({2*(N2-1)})")
            for e in range(8): A(f"v_xor_b32 v{r+e}, s{sT8}, v{r+e}")
            A(f"""v_or3_b32 v2, v{r}, v{r+1}, v{r+2}
                  v_or3_b32 v2, v2, v{r+3}, v{r+4}
                  v_or3_b32 v2, v2, v{r+5}, v{r+6}
                  v_or_b32 v2, v2, v{r+7}
                  v_pk_add_f32 v[8:9], v[{r}:{r+1}], v[{r+4}:{r+5}]
                  v_pk_add_f32 v[10:11], v[{r+2}:{r+3}], v[{r+6}:{r+7}]
                  v_or_b32_dpp v2, v2, v2 quad_perm:[1,0,3,2] row_mask:0xf bank_mask:0xf
                  s_nop 1
                  v_or_b32_dpp v2, v2, v2 quad_perm:[2,3,0,1] row_mask:0xf bank_mask:0xf
                  v_and_b32 v2, 15, v2
                  v_cmp_ne_u32 vcc, 0, v2
                  s_and_b64 exec, exec, vcc
                  s_cbranch_execz L_f2x""")
            if gap2: A(f"s_sleep {gap2}")
            lds2(k)
        A(f"s_sub_u32 s{sSPIN}, s{sSPIN}, 1\ns_cbranch_scc0 L_f2\nL_f2x:")
    A("s_mov_b64 exec, -1")
    stamp(12)
    red4()
    A(f"""v_cvt_pk_bf16_f32 v8, 0, v8
          v_mul_f32 v8, v8, v90
          v_cvt_pk_bf16_f32 v8, 0, v8
          v_add_f32 v8, v8, v91
          v_cvt_pk_bf16_f32 v8, v8, v8
          s_mov_b32 exec_lo, 0x000f000f
          s_mov_b32 exec_hi, 0x000f000f
          buffer_store_short v8, v93, {srd(SOUT)}, 0 offen
          s_cmp_lg_u32 s{sLID}, 0
          s_cbranch_scc1 L_fin
          s_mov_b64 exec, 3
          v_mov_b32 v40, v41
          v_mov_b32 v42, v41
          buffer_store_dwordx4 v[40:43], v96, {srd(SWS)}, 0 offen""")
    A("L_fin:")
    if diag is not None:
        A("s_waitcnt vmcnt(0)")
        stamp(13)
        if diag == 99: A(f"s_xor_b32 s{sT0}, s{sST+15}, 1\ns_mul_i32 s{sT0}, s{sT0}, 2000\ns_xor_b32 s{sT1}, s{sFAST}, 1\ns_mul_i32 s{sT1}, s{sT1}, 4000\ns_add_u32 s{sT0}, s{sT0}, s{sT1}\ns_add_u32 s{sT0}, s{sT0}, 12000")
        else: A(f"s_sub_u32 s{sT0}, s{sST+diag}, s{sST}\ns_mul_i32 s{sT0}, s{sT0}, {mult}\ns_add_u32 s{sT0}, s{sT0}, 12000\ns_min_u32 s{sT0}, s{sT0}, 100000")
        A(f"L_diag:\ns_memrealtime s[100:101]\ns_waitcnt lgkmcnt(0)\ns_sub_u32 s{sT1}, s100, s{sST}\ns_cmp_lt_u32 s{sT1}, s{sT0}\ns_cbranch_scc1 L_diag")
    if wr:
        A("s_waitcnt vmcnt(0)")
        stamp(13, True)
        A(f"s_lshl_b32 s{sT0}, s2, 8\ns_add_u32 s{sT0}, s{sT0}, {STAMP_OFF}")
        A("L_wrstamps:\ns_sleep 127\ns_sleep 127\ns_sleep 127\ns_mov_b64 exec, 1\nv_mov_b32 v2, 0\nv_mov_b32 v5, 0")
        for i in range(16):
            A(f"v_mov_b32 v4, s{sST+i}\nbuffer_store_dwordx2 v[4:5], v2, {srd(SWS)}, s{sT0} offen offset:{8*i}\ns_waitcnt vmcnt(0)")
    A("L_end:\ns_endpgm\nL_codeend:")
    nv = 220
    A('.section .rodata,"a"\n.p2align 6')
    A(f".amdhsa_kernel {NAME}_kernel")
    A(f".amdhsa_next_free_vgpr {nv}\n.amdhsa_next_free_sgpr 102\n.amdhsa_accum_offset {(nv+3)//4*4}")
    A(".amdhsa_group_segment_fixed_size 0\n.amdhsa_kernarg_size 88\n.amdhsa_user_sgpr_count 2")
    A(".amdhsa_user_sgpr_kernarg_segment_ptr 1\n.amdhsa_system_sgpr_workgroup_id_x 1\n.amdhsa_float_denorm_mode_32 3")
    A(".end_amdhsa_kernel")
    L = A.L
    def drop(f): return [("    s_nop 0" if f(x) else x) for x in L]
    if abl & 1: L = drop(lambda x: "buffer_store_dwordx4 v[40:43], v94" in x)
    if abl & 2: L = drop(lambda x: "buffer_store_dword v2" in x and ", v66," in x and "offset" not in x)
    if abl & 4: L = drop(lambda x: "buffer_store_dword v" in x and ", v66," in x and "offset" in x)
    if abl & 8: L = drop(lambda x: ("buffer_load_dwordx4" in x and ", v94," in x and "offset" in x) or "buffer_load_dword v98, v2" in x)
    if abl & 16: L = drop(lambda x: "buffer_load_dwordx4 v[1" in x and ", v94," in x and "offset" not in x)
    if abl & 32: L = drop(lambda x: "buffer_store_dwordx4 v[40:43], v88" in x or "buffer_load_dwordx4 v[44:47], v94" in x)
    if abl & 64: L = drop(lambda x: "buffer_store_dwordx2 v[56:57]" in x)
    if abl & 128: L = drop(lambda x: "buffer_store_dword v57" in x)
    if abl & 256: L = drop(lambda x: "s[52:55]" in x and "buffer_load" in x)
    if now: L = [("    s_nop 0" if (" lds" in x and "buffer_load" in x) else x) for x in L]
    return "\n".join(L) + "\n"

if __name__ == "__main__":
    for sp in sys.argv[1:]:
        kw = {}
        for kv in sp.split(","):
            k, v = kv.split("=")
            kw[k] = int(v)
        fn = "k_g5" + sp.replace(",", "_").replace("=", "") + ".s"
        open(fn, "w").write(gen(**kw))
        print(fn)
```

```python
import sys, struct
NAME = "recurrent_scan__mha_block_cached__dense_activation_relu__decode"
def f2u(x): return struct.unpack("<I", struct.pack("<f", x))[0]

WS_E, WS_QP, WS_YP, WS_TK, WS_LB, WS_SP, WS_OP, WS_END = 0, 0x1000, 0x40000, 0x60000, 0x80000, 0xD0000, 0x120000, 0x1E0100
WS_GB = 0x90000
WS_ML = 0x58000
STAMP_OFF = 700 << 20
L_XN = 0
L_H = 5248
L_Q = 6912
L_FLAG = 8576
L_SC = 8704
L_T2 = 16896
L_PART = L_T2
L_A = L_T2 + 12288
L_TW = 57856
L_W2 = 88576
LDS_BYTES = 122880
BSTR = 32 * 1572864

class G:
    def __init__(s): s.L = []; s.n = 0
    def __call__(s, t):
        for x in t.split("\n"):
            x = x.strip()
            if x: s.L.append(x if x.endswith(":") or x.startswith(".") or x.startswith(";") else "    " + x)
    def lab(s, p):
        s.n += 1; return f"L_{p}_{s.n}"

HEADER = """; Fused decode step: out = x + (softmax(q K^T / sqrt(192)) V wo) * silu(relu(xn w1) w2), q = xn wq, xn = LayerNorm(x).
; Hand-offs go through ws and validate themselves: {bf16 pair, tag} granules, or fp32 words whose low 4 bits are the
; Stores are write-through (sc1) unless all readers were seen (d_debug bytes) to share this workgroup's XCD."""

def gen(X1=3, stamps=0, spin=200000, pre=1, now=0, diag=None, mult=4, noaux=0, fast=1, ctl=1, P0=4, NK=55, LA=1, LB=5,
        PLAX=60, XL=6, XT=2, slp=2, tw=4, PG=20, DD_=6, smx=1, PW=60, GO=2, amap=4, rf=0, th=0, TA=9, TB=9, NX=4, FL=2, abl=0, fl=0, fs=0, NL=6, GW=6, N1=2, N2=1, gap1=0, gap2=0, nor4=0, d2=0, pst=0, tlb=0, ev=1, kt=0, b5=1, ent=1, dl=0, k2=0, fine=0, A2=5, B2=9, adj=1, PT=50, LB2=4, hm=0, slo=3, shi=6, tp=0, cm=3, PF=44, cm2=1, xw=0, pt3=3, qw=0, he=1, XV=None, be=0, pa=0, RL=0, NA=2, ew=1, wst=0, md=0, GT=5, PGB=8, GB=1, sp=0, wx=1, wl=0, lm=1, skp=0, at=0, at1=1, XS=0, XU=0, lv=9955443, lv2=9954433, df=5, rt=0, lp=0, kp=1, fb=1, bm=0, wb=0, df0=5, nb=0, zb=0, pr=1, sl=1):
    A = G()
    wr = stamps and diag is None
    if diag is not None: stamps = 1
    NG = 8
    if noaux: spin = 0; ev = 0; k2 = 0; ew = 0
    assert ev or not ew
    assert not sl or (not hm and pt3 == 3 and not xw)
    SLB = WS_OP - WS_QP
    sTG = 17 if sl else 61
    assert not nb or (ev and ew == 1 and NL == 6 and wx and not noaux)
    assert not wx or (NL <= 6 and ew)
    assert not (GT and hm)
    assert not k2 or (ent == 1 and ev)
    POL = ['sc1', 'sc0 sc1', 'sc1 nt', 'sc0 sc1 nt', 'nt', 'sc0 nt']
    sW, sLID, sG, sJ = 3, 26, 27, 60
    SK, SR2, SWS, SX, SWO, SW2, SOUT = 28, 36, 40, 44, 48, 52, 56
    sTAG, sSTR, sCOLB, sKH, sOUTC, sVAL = 61, 62, 63, 64, 65, 66
    sT0, sT1, sT2, sT3, sOFF, sIT, sSPIN = 67, 68, 69, 70, 71, 72, 73
    sM1, sM2, sM3, sEX = 74, 76, 78, 80
    sSC, sL2E = 82, 83
    sXCC, sFAST = 14, 15
    sT8 = 19
    sH = 4
    sP, sMODE, sREF, sI, sWO, sWM = 14, 15, 20, 21, 16, 17
    sST = 84
    def srd(r): return f"s[{r}:{r+3}]"
    light = stamps == 2
    def stamp(i, keep=False):
        if stamps and (keep or not light):
            A(f"s_memrealtime s[100:101]\ns_waitcnt lgkmcnt(0)\ns_mov_b32 s{sST+i}, s100")
    def mktag(): A(f"s_mul_i32 s{sTAG}, s{sTAG}, 0x9e3779b1\ns_add_u32 s{sTAG}, s{sTAG}, 0x7f4a7c15")
    def masks():
        A(f"""s_mov_b32 s{sM1}, 0xffff0000
              s_mov_b32 s{sM1+1}, 0
              s_mov_b32 s{sM2}, 0
              s_mov_b32 s{sM2+1}, 0xffff
              s_mov_b32 s{sM3}, 0
              s_mov_b32 s{sM3+1}, 0xffff0000""")
    WSN = 0x30000000 if stamps else WS_END

    def poll(loads, tags, sleep=0, mid=None, sTAG=sTAG):
        lp = A.lab("poll"); ex = A.lab("pollx"); l1 = A.lab("poll1")
        A(f"s_mov_b32 s{sSPIN}, {spin}")
        if mid:
            for l in loads: A(l)
            mid()
            A(f"s_branch {l1}")
        A(f"{lp}:")
        for l in loads: A(l)
        A(f"{l1}:")
        A(f"s_sub_u32 s{sSPIN}, s{sSPIN}, 1")
        A("s_waitcnt vmcnt(0)")
        A(f"s_cbranch_scc1 {ex}")
        A(f"v_xor_b32 v2, s{sTAG}, v{tags[0]}")
        for t in tags[1:]:
            A(f"v_bitop3_b32 v2, v2, v{t}, s{sTAG} bitop3:0xf6")
        A("v_cmp_ne_u32 vcc, 0, v2\ns_and_b64 exec, exec, vcc")
        if sleep:
            A(f"s_cbranch_execz {ex}\ns_sleep {sleep}\ns_branch {lp}")
        else:
            A(f"s_cbranch_execnz {lp}")
        A(f"{ex}:")

    def ppoll(ns, loads, tags, work, mid=None, gap=0, sTAG=sTAG):
        lp = A.lab("pp"); ex = A.lab("ppx")
        n = len(loads(0))
        A(f"s_mov_b32 s{sSPIN}, {spin}")
        for k in range(ns):
            for l in loads(k): A(l)
            if k == 0 and mid: mid()
            elif k < ns - 1: A("s_sleep 1")
        A(f"{lp}:")
        for k in range(ns):
            tg = tags(k)
            A(f"s_waitcnt vmcnt({(ns-1)*n})")
            work(k)
            A(f"v_xor_b32 v2, s{sTAG}, v{tg[0]}")
            for t in tg[1:]: A(f"v_bitop3_b32 v2, v2, v{t}, s{sTAG} bitop3:0xf6")
            A(f"v_cmp_ne_u32 vcc, 0, v2\ns_and_b64 exec, exec, vcc\ns_cbranch_execz {ex}")
            if gap: A(f"s_sleep {gap}")
            for l in loads(k): A(l)
        A(f"s_sub_u32 s{sSPIN}, s{sSPIN}, 1\ns_cbranch_scc0 {lp}\n{ex}:")

    def dma_regs():
        A("; DMA address registers for [192][80] tiles: v60..v64 (piece p = 64i + lane: row p/10, 16-byte column p%10)")
        A(f"s_mov_b32 s{sT0}, 0xcccd")
        for i in range(5):
            A(f"""v_add_u32 v2, {64*i}, v0
                  v_mul_lo_u32 v3, v2, s{sT0}
                  v_lshrrev_b32 v3, 19, v3
                  v_mul_u32_u24 v4, 10, v3
                  v_sub_u32 v4, v2, v4
                  v_mul_u32_u24 v3, 1280, v3
                  v_lshl_add_u32 v{60+i}, v4, 4, v3""")
    def tile_dma(S, soff, win, cnt, base):
        A(f"s_mov_b32 m0, {base}")
        for i in range(cnt):
            if win and i >= win: A(f"s_waitcnt vmcnt({win-1})")
            else: A("s_nop 0")
            A(f"buffer_load_dwordx4 v{60+i%5}, {srd(S)}, s{soff} offen nt lds")
            A("s_add_u32 m0, m0, 1024")
            if i % 5 == 4: A(f"s_add_u32 s{soff}, s{soff}, 40960")
    def w2_par():
        A(f"""s_lshl_b32 s{sT2}, s{sG}, 1
              s_add_u32 s{sT2}, s{sT2}, s{sJ}
              s_sub_u32 s{sT2}, s{sT2}, 6
              s_lshr_b32 s{sT3}, s{sT2}, 3
              s_and_b32 s{sT2}, s{sT2}, 7""")
    def w2_dma(win):
        A(f"""s_mul_i32 s{sOFF}, s{sT3}, 245760
              s_mul_i32 s{sT0}, s{sT2}, 160
              s_add_u32 s{sOFF}, s{sOFF}, s{sT0}""")
        tile_dma(SW2, sOFF, win, 30, L_W2)
    def wo_dma(win):
        if wx:
            A("; column tile 32+j of wo (a quarter of a line that four workgroups share): [192][16], 32 rows per instruction")
            A(f"""s_mul_i32 s{sOFF}, s{35 if hm else sG}, 245760
                  s_lshl_b32 s{sT0}, s{sJ}, 5
                  s_add_u32 s{sOFF}, s{sOFF}, s{sT0}
                  s_add_u32 s{sOFF}, s{sOFF}, 1024
                  v_lshrrev_b32 v2, 1, v0
                  v_mul_u32_u24 v2, 1280, v2
                  v_and_b32 v3, 1, v0
                  s_mov_b32 m0, {L_TW + 24576}
                  v_lshl_add_u32 v2, v3, 4, v2""")
            for i in range(6):
                A(f"buffer_load_dwordx4 v2, {srd(SWO)}, s{sOFF} offen nt lds")
                if i < 5: A(f"s_add_u32 m0, m0, 1024\ns_add_u32 s{sOFF}, s{sOFF}, 40960")
            if NL < 6:
                A("; and the last rows of each stream wave's share of column tiles 4j..4j+3")
                A(f"""s_mul_i32 s{sOFF}, s{35 if hm else sG}, 245760
                      s_lshl_b32 s{sT0}, s{sJ}, 7
                      s_add_u32 s{sOFF}, s{sOFF}, s{sT0}
                      v_lshrrev_b32 v2, 3, v0
                      v_mul_u32_u24 v2, 1280, v2
                      v_lshrrev_b32 v4, 4, v0
                      v_lshlrev_b32 v4, 1, v4
                      v_and_b32 v5, 7, v0
                      v_xor_b32 v4, v4, v5
                      v_lshl_add_u32 v2, v4, 4, v2""")
                for w in range(4):
                    for k in range(NL, 6):
                        A(f"s_mov_b32 m0, {L_TW + 6144*w + 1024*k}\ns_add_u32 s{sT0}, s{sOFF}, {(48*w + 8*k)*1280}\nbuffer_load_dwordx4 v2, {srd(SWO)}, s{sT0} offen nt lds")
        elif NL * 4 < 30:
            A("; first part of the wo tile")
            A(f"""s_mul_i32 s{sOFF}, s{35 if hm else sG}, 245760
                  s_mul_i32 s{sT0}, s{sJ}, 160
                  s_add_u32 s{sOFF}, s{sOFF}, s{sT0}""")
            tile_dma(SWO, sOFF, win, 30 - 4 * NL, L_TW)

    def spin_flag(addr, off, tmp):
        l = A.lab("sf")
        A(f"{l}:\nds_read_b32 v{tmp}, v{addr} offset:{off}\ns_waitcnt lgkmcnt(0)\nv_cmp_eq_u32 vcc, 0, v{tmp}\ns_cbranch_vccnz {l}")
    def flag_init():
        A(f"v_mov_b32 v99, {L_FLAG}\nv_mov_b32 v104, 0\nv_mov_b32 v105, 0")
        for i in range(0, 14 if nb else 12, 2): A(f"ds_write2_b64 v99, v[104:105], v[104:105] offset0:{i} offset1:{i+1}")

    A(HEADER)
    A(f"; @launch grid=(256,1,1) block=(384,1,1) lds={LDS_BYTES}")
    A('.amdgcn_target "amdgcn-amd-amdhsa--gfx950"\n.text')
    A(f".globl {NAME}_kernel\n.p2align 8\n.type {NAME}_kernel,@function\n{NAME}_kernel:")
    A("s_cmp_ge_u32 s2, 256\ns_cbranch_scc1 L_end")
    A("s_load_dwordx16 s[4:19], s[0:1], 0")
    if not k2:
        A("s_load_dwordx2 s[24:25], s[0:1], 80")
        A("s_load_dwordx4 s[20:23], s[0:1], 64")
    if stamps: A("s_memrealtime s[100:101]")
    vKV, vS, vU, vP, vPL, vPH, vM, vL, vN, vN2, vTAB, vFA, vAD, vREF = 1, 3, 4, 5, 6, 7, 8, 9, 10, 11, 12, 13, 14, 15
    vQ, vACC, vRING = 16, 28, 52
    vSCA, vQA, vMPA, vSPARE, vWD = 148, 149, 150, 152, (151 if wx else 200)
    assert NX <= (6 if wx else 4)
    A("v_lshrrev_b32 v1, 6, v0\nv_and_b32 v0, 63, v0")
    A(f"s_and_b32 s{sT2}, s2, 7\ns_lshl_b32 s{sLID}, s{sT2}, 5")
    A(f"v_readfirstlane_b32 s{sW}, v1")
    A(f"s_lshr_b32 s{sT0}, s2, 3\ns_or_b32 s{sLID}, s{sLID}, s{sT0}")
    A(f"s_lshr_b32 s{sG}, s{sLID}, 3\ns_and_b32 s{sJ}, s{sLID}, 7")
    sHD = 35 if hm else sG
    if hm: A(f"s_and_b32 s{sHD}, s{sT0}, 24\ns_or_b32 s{sHD}, s{sHD}, s{sT2}")
    A(f"""s_lshr_b32 s{sT0}, s{sJ}, 1
          s_and_b32 s{sKH}, s{sJ}, 1
          s_mul_i32 s{sOUTC}, s{sHD}, 3
          s_add_u32 s{sOUTC}, s{sOUTC}, s{sT0}
          s_and_b32 s{sT0}, s{sG}, 3
          s_mul_i32 s{sT2}, s{sT2}, 3
          s_add_u32 s{sT2}, s{sT2}, s{sT0}
          s_cmp_lt_u32 s{sT0}, 3
          s_cselect_b32 s{sVAL}, 1966080, 0
          s_cmp_lt_u32 s{sJ}, 6
          s_cselect_b32 s{sVAL}, 7864320, s{sVAL}
          s_cselect_b32 s{sOUTC}, s{sOUTC}, s{sT2}
          s_cselect_b32 s{sSTR}, 4, 1
          s_cselect_b32 s{sT0}, 0, 96
          s_lshl_b32 s{sCOLB}, s{sOUTC}, 7
          s_add_u32 s{sOUTC}, s{sOUTC}, s{sT0}
          s_mul_i32 s{sSTR}, s{sSTR}, 3072
          v_lshrrev_b32 v6, 4, v0
          v_and_b32 v7, 15, v0
          s_sub_u32 s{sW}, s{sW}, 1""")
    X, F = 8, 28
    def stream_par():
        A(f"""v_lshrrev_b32 v2, 3, v0
              v_mul_lo_u32 v3, v2, s{sSTR}
              v_lshlrev_b32 v4, 1, v6
              v_and_b32 v5, 7, v0
              v_xor_b32 v4, v4, v5
              v_lshl_add_u32 v3, v4, 4, v3
              s_lshl2_add_u32 s{sT0}, s{sKH}, s{sW}
              s_mul_i32 s{sT0}, s{sT0}, s{sSTR}
              s_mulk_i32 s{sT0}, 80
              s_add_u32 s{sOFF}, s{sT0}, s{sCOLB}
              s_lshl_b32 s{sT2}, s{sSTR}, 3
              s_mul_i32 s{sT1}, s{sW}, 10240
              s_add_u32 m0, s{sT1}, {L_T2}
              {f"s_add_u32 s{sT1}, s{sT1}, {L_T2+10240}" if dl else ""}
              s_mov_b32 s{SR2+3}, 0x20000
              s_mov_b32 s{SR2+2}, s{sVAL}""")
    def aux_par():
        A(f"""v_mul_u32_u24 v4, 1280, v6
              v_lshl_add_u32 v4, v7, 4, v4
              s_mov_b32 s{SX+3}, 0x20000
              s_mov_b32 s{SX+2}, 5120""")
    def kwait():
        A("s_waitcnt lgkmcnt(0)")
        if stamps: A(f"s_mov_b32 s{sST}, s100")
    def aux_first():
        A(f"s_cmp_eq_u32 s{sW}, 4\ns_cbranch_scc1 L_pacer")
        A(f"s_mov_b32 s{SX}, s4\ns_mov_b32 s{SX+1}, s5")
        for i in range(5): A(f"buffer_load_dwordx4 v[{X+4*i}:{X+4*i+3}], v4, {srd(SX)}, 0 offen offset:{256*i}")
        if not ev: A(f"s_load_dword s{sTAG}, s[24:25], 0")
        A(f"""s_getreg_b32 s{sXCC}, hwreg(HW_REG_XCC_ID, 0, 4)
              s_or_b32 s{sXCC}, s{sXCC}, 0x80
              v_mov_b32 v78, s{sXCC}
              v_mov_b32 v79, s{sLID}
              s_mov_b64 exec, 1
              global_store_byte v79, v78, s[22:23]
              s_mov_b64 exec, 3
              v_mul_u32_u24 v96, {WS_END-16}, v0
              {"global_load_dwordx4 v[100:103], v96, s[24:25]" if ev else ""}
              s_mov_b64 exec, -1""")
        if pre:
            A("; pull the kernel's own code into L2: each of the 32 workgroups that share an L2 touches 6 lines")
            A(f"""s_getpc_b64 s[{sEX}:{sEX+1}]
                  L_pc:
                  s_and_b32 s{sT0}, s{sLID}, 31
                  v_lshl_add_u32 v4, v0, 5, s{sT0}
                  v_lshlrev_b32 v4, 7, v4
                  v_min_u32 v5, L_codeend-L_pc-4, v4
                  s_mov_b64 exec, 63
                  global_load_dword v98, v5, s[{sEX}:{sEX+1}]
                  s_mov_b64 exec, -1""")
        A("s_branch L_aux")
    if ent == 0:
        stream_par(); aux_par()
        A(f"s_cmp_lt_u32 s{sW}, 4"); kwait(); A("s_cbranch_scc1 L_stream")
        aux_first()
    elif ent == 1:
        A(f"s_cmp_lt_u32 s{sW}, 4\ns_cbranch_scc0 L_other")
        stream_par(); kwait()
    elif ent == 2:
        A(f"s_cmp_lt_u32 s{sW}, 4\ns_cbranch_scc1 L_stream0")
        aux_par(); kwait(); aux_first()
        A("L_stream0:")
        stream_par(); kwait()

    A("L_stream:")
    A(f"s_cmp_lt_u32 s{sJ}, 6\ns_cselect_b32 s{SR2}, s10, s16\ns_cselect_b32 s{SR2+1}, s11, s17")
    tab = [f"s_mul_i32 s{sT3}, s{sHD}, 1572864",
           f"s_add_u32 s{SK}, s6, s{sT3}", f"s_addc_u32 s{SK+1}, s7, 0", f"s_add_u32 s8, s8, s{sT3}", "s_addc_u32 s9, s9, 0",
           f"s_mov_b32 s{SK+2}, {3*BSTR + 1572864}", f"s_mov_b32 s{SK+3}, 0x20000",
           *((f"v_mul_u32_u24 v{vKV}, 384, v2", f"v_lshl_add_u32 v{vKV}, v5, 4, v{vKV}"),
             (f"v_mul_u32_u24 v{vKV}, 768, v6", f"v_lshl_add_u32 v{vKV}, v7, 4, v{vKV}"),
             (f"v_lshlrev_b32 v{vKV}, 4, v0", "s_nop 0"))[lp],
           f"v_lshl_add_u32 v8, v7, 2, s{sW}"]
    if amap == 9:
        tab.pop()
        tab += [f"s_lshl2_add_u32 s{sT0}, s{sLID}, s{sW}", f"s_lshl_b32 s{sT0}, s{sT0}, 6",
                f"v_lshl_add_u32 v8, v7, 2, s{sT0}", "global_load_dword v8, v8, s[14:15]", "s_waitcnt vmcnt(0)"]
    elif amap == 8:
        tab.pop()
        tab[0] = f"s_mov_b32 s{sT3}, 0"; tab[5] = f"s_mov_b32 s{SK+2}, 201326592"
        tab += [f"s_lshl2_add_u32 s{sT0}, s{sLID}, s{sW}", f"s_lshl_b32 s{sT0}, s{sT0}, 8",
                f"v_lshl_add_u32 v8, v0, 2, s{sT0}", "global_load_dword v8, v8, s[14:15]", "s_waitcnt vmcnt(0)"]
    elif amap == 7:
        tab.pop()
        tab += [f"s_lshl2_add_u32 s{sT0}, s{sLID}, s{sW}", f"s_lshl_b32 s{sT0}, s{sT0}, 6",
                f"v_lshl_add_u32 v8, v7, 2, s{sT0}", "global_load_dword v8, v8, s[14:15]",
                "v_lshlrev_b32 v9, 2, v0", "v_add_u32 v9, 0x10000, v9", f"global_load_dword v{vKV}, v9, s[14:15]", "s_waitcnt vmcnt(0)"]
    elif amap == 4:
        pos = ("jwljwllj", "jwljjllw", "jjljwllw", "jwljllwj", "jlwwjllj")[kp]
        tab.pop(); tab.pop(); tab.pop()
        tab += [f"; key of (step t, lane group l): bits 0..7 = next bit of {' '.join(pos)}, bits 8..11 = t + 4g - the order DRAM likes best"]
        cnt = dict(l=0, w=0, j=0); fs_, fv = True, True
        for i, c in enumerate(pos):
            b = cnt[c]; cnt[c] += 1
            if c == "l":
                tab += [f"v_bfe_u32 v9, v0, {3+b}, 1", f"v_lshlrev_b32 v8, {i}, v9" if fv else f"v_lshl_add_u32 v8, v9, {i}, v8"]; fv = False
            else:
                src = sW if c == "w" else sJ
                tab += [f"s_bfe_u32 s{sT1}, s{src}, {0x10000 + b:#x}", f"s_lshl_b32 s{sT0 if fs_ else sT1}, s{sT1}, {i}"]
                if not fs_: tab += [f"s_or_b32 s{sT0}, s{sT0}, s{sT1}"]
                fs_ = False
        tab += [f"v_mul_u32_u24 v{vKV}, 384, v8", f"v_lshl_add_u32 v{vKV}, v5, 4, v{vKV}",
                f"s_lshl_b32 s{sT1}, s{sG}, 2", f"v_add_u32 v8, s{sT1}, v7", "v_and_b32 v8, 15, v8", f"v_lshl_add_u32 v8, v8, 8, s{sT0}"]
    elif amap == 3:
        tab.pop()
        tab += ["; block (8 keys) of step t: (w + 4(j&1) + 8(t&1) + 16(j>>1) + 64(t>>1) + 128g) mod 512 - the order DRAM likes best",
                f"s_lshr_b32 s{sT0}, s{sJ}, 1", f"s_lshl3_add_u32 s{sT0}, s{sG}, s{sT0}", f"s_lshl2_add_u32 s{sT0}, s{sT0}, s{sKH}", f"s_lshl2_add_u32 s{sT0}, s{sT0}, s{sW}",
                "v_and_b32 v8, 1, v0", f"v_lshl_add_u32 v8, v8, 3, s{sT0}", "v_lshrrev_b32 v9, 1, v7", "v_lshl_add_u32 v8, v9, 6, v8", "v_and_b32 v8, 0x1ff, v8"]
    elif amap == 2:
        tab.pop()
        RF = [lambda g: 4 * (g & 3), lambda g: 4 * (-g & 3), lambda g: 4 * ((g + (g >> 2)) & 3), lambda g: 4 * ((g ^ (g >> 2)) & 3),
              lambda g: 4 * (0, 2, 1, 3)[g & 3], lambda g: 4 * (g & 3) + ((g >> 2) & 3), lambda g: 4 * (g & 3) + 2 * ((g >> 2) & 1),
              lambda g: 4 * ((g + (g >> 3)) & 3), lambda g: (4 * (g & 3) + (0, 1, 3, 4)[(g >> 2) & 3]) & 15]
        if rf == 0:
            tab += [f"s_lshl_b32 s{sT0}, s{sHD if hm == 1 else sG}, 2"]
        elif rf == 99:
            tab += [f"s_lshl_b32 s{sT0}, s{sG}, 2", f"s_load_dword s{sT0}, s[14:15], s{sT0}", "s_waitcnt lgkmcnt(0)"]
        else:
            rt = sum(RF[rf](g) << (4 * g) for g in range(16))
            tab += [f"s_mov_b32 s18, {rt & 0xffffffff:#x}", f"s_mov_b32 s19, {rt >> 32:#x}", f"s_lshl_b32 s{sT0}, s{sG}, 2", f"s_lshr_b64 s[18:19], s[18:19], s{sT0}", f"s_and_b32 s{sT0}, s18, 15"]
        tab += [f"v_add_u32 v8, s{sT0}, v7", "v_and_b32 v8, 15, v8",
                f"s_lshl2_add_u32 s{sT0}, s{sKH}, s{sW}", f"v_lshl_add_u32 v8, v8, 3, s{sT0}",
                f"s_lshr_b32 s{sT1}, s{sJ}, 1", f"s_cmp_eq_u32 s{sT1}, 3", f"s_cselect_b32 s{sT0}, 0, s{sT1}",
                f"v_mad_u32_u24 v9, v8, 3, s{sT0}", "v_lshrrev_b32 v9, 5, v9",
                f"s_lshl_b32 s{sT1}, s{sT1}, 5", f"s_add_u32 s{sT1}, s{sT1}, 2", f"v_lshl_add_u32 v10, v9, 7, s{sT1}",
                f"s_sub_u32 s{sT1}, 2, s{sT0}", f"v_lshl_add_u32 v11, v9, 5, s{sT1}",
                "v_mul_u32_u24 v10, 0x5556, v10", "v_mul_u32_u24 v11, 0x5556, v11", "v_lshrrev_b32 v10, 16, v10", "v_lshrrev_b32 v11, 16, v11",
                "v_add_u32 v8, v8, v10", "v_sub_u32 v8, v8, v11"]
    elif amap:
        etab = sum(((1, 0, 2)[jj % 3]) << (2 * jj) for jj in range(8))
        tab += [f"s_lshl_b32 s{sT0}, s{sJ}, 1", f"s_lshr_b32 s{sT0}, {etab}, s{sT0}", f"s_and_b32 s{sT0}, s{sT0}, 3",
                f"v_mad_u32_u24 v9, v8, 3, s{sT0}", "v_lshrrev_b32 v9, 5, v9",
                f"s_lshl_b32 s{sT1}, s{sJ}, 5", f"s_add_u32 s{sT1}, s{sT1}, 2", f"v_lshl_add_u32 v10, v9, 8, s{sT1}",
                f"s_sub_u32 s{sT1}, 2, s{sT0}", f"v_lshl_add_u32 v11, v9, 5, s{sT1}",
                "v_mul_u32_u24 v10, 0x5556, v10", "v_mul_u32_u24 v11, 0x5556, v11", "v_lshrrev_b32 v10, 16, v10", "v_lshrrev_b32 v11, 16, v11",
                "v_add_u32 v8, v8, v10", "v_sub_u32 v8, v8, v11"]
    else:
        tab += [f"s_lshl_b32 s{sT0}, s{sJ}, 2", f"s_add_u32 s{sT0}, s{sT0}, s{sW}", f"v_lshl_add_u32 v8, v7, 5, s{sT0}"]
    tab += ["s_nop 0" if amap == 8 else f"v_lshl_add_u32 v8, v6, {17 if amap in (4, 7) else 14}, v8", f"v_mul_u32_u24 v{vTAB}, {384 if amap in (4, 7) else 3072}, v8"]
    if pst: A("s_memrealtime s[32:33]")
    if dl:
        A(f"""L_dma:
              buffer_load_dwordx4 v3, {srd(SR2)}, s{sOFF} offen nt lds
              s_add_u32 m0, m0, 1024
              s_add_u32 s{sOFF}, s{sOFF}, s{sT2}
              s_cmp_lt_u32 m0, s{sT1}
              s_cbranch_scc1 L_dma""")
    for i in range(0 if dl else 10):
        A(f"buffer_load_dwordx4 v3, {srd(SR2)}, s{sOFF} offen nt lds")
        if i < 9: A(f"s_add_u32 m0, m0, 1024\ns_add_u32 s{sOFF}, s{sOFF}, s{sT2}")
    if pst: A("s_memrealtime s[34:35]")
    if ent == 1:
        if k2: A("s_load_dwordx2 s[24:25], s[0:1], 80")
        A("s_branch L_stream1\nL_other:")
        if k2: A("s_load_dwordx2 s[24:25], s[0:1], 80\ns_load_dwordx4 s[20:23], s[0:1], 64")
        aux_par(); kwait(); aux_first()
        A("L_stream1:")
    if rt: A("s_load_dwordx8 s[52:59], s[14:15], 0")
    for x in tab: A(x)
    A("s_nop 0" if ev else f"s_load_dword s{sTAG}, s[24:25], 0")
    A(f"v_readlane_b32 s{sOFF}, v{vTAB}, 0\nv_readlane_b32 s{sT3}, v{vTAB}, 1")
    def issue(slot, so=None):
        for j in range(3):
            r = (vSPARE + (slot - 100) * 12 if slot >= 100 else vRING + (slot % NG) * 12) + j * 4
            A(f"buffer_load_dwordx4 v[{r}:{r+3}], v{vKV}, {srd(SK)}, s{sOFF if so is None else so} offen offset:{(128, 256, 1024)[lp]*j} nt")
    A(f"s_mov_b32 s{sSC}, {f2u(192 ** -0.5):#x}\ns_mov_b32 s{sL2E}, {f2u(1.4426950408889634):#x}")
    for i in range(24): A(f"v_mov_b32 v{vACC+i}, 0")
    A(f"""v_mov_b32 v{vS}, 0
          v_mov_b32 v{vREF}, 0
          v_lshlrev_b32 v{vQA}, 4, v5
          s_lshl_b32 s{sT0}, s{sW}, 11
          v_lshl_add_u32 v{vSCA}, v2, 5, s{sT0}
          s_mul_i32 s{sT0}, s{sW}, 768
          v_mov_b32 v{vMPA}, 0
          v_lshl_add_u32 v{vAD}, v6, 3, s{sT0}
          v_lshl_add_u32 v{vAD}, v5, 5, v{vAD}
          s_lshl_b32 s{sT0}, s{sW}, 2
          v_mov_b32 v{vFA}, s{sT0}
          s_mov_b32 s{sP}, 0
          s_mov_b32 s{sMODE}, 1
          {f"s_cmp_eq_u32 s{sVAL}, 1966080" if fb else ""}
          {f"s_cselect_b32 s18, 9, {df0}" if fb else ""}
          s_mov_b32 s{sI}, {7+NX}""")
    if wr: A(f"s_mov_b32 s{sST+15}, 0")
    if pst: A("s_memrealtime s[52:53]")
    if TA < 10: A(f"s_waitcnt vmcnt({TA})")
    if pst: A("s_memrealtime s[54:55]")
    issue(0)
    if TB < 10: A(f"s_waitcnt vmcnt({TB+3})")
    issue(1, sT3)
    A(f"v_readlane_b32 s{sOFF}, v{vTAB}, 2\ns_nop 1")
    A("s_waitcnt vmcnt(6) lgkmcnt(0)\ns_barrier")
    stamp(1)
    for g in range(2, NG - 1 + NX):
        if fb & 2:
            l = A.lab("fb")
            A(f"s_waitcnt vmcnt({X1 + 3 + 3 * max(0, g - (NG - 2 + NX - FL))})\ns_cmp_eq_u32 s18, 9\ns_cbranch_scc1 {l}")
        A(f"s_waitcnt vmcnt({X1 + 3 * max(0, g - (NG - 2 + NX - FL))})")
        if fb & 2: A(f"{l}:")
        issue(g if g < NG - 1 else 100 + g - (NG - 1))
        A(f"v_readlane_b32 s{sOFF}, v{vTAB}, {g+1}\ns_nop 3")
    if not ev: mktag()
    A(f"s_mov_b32 s{SWS}, s24\ns_mov_b32 s{SWS+1}, s25\ns_mov_b32 s{SWS+2}, {WSN}\ns_mov_b32 s{SWS+3}, 0x20000")
    A(f"""s_mov_b32 s{SWO}, s12
          s_mov_b32 s{SWO+1}, s13
          s_mov_b32 s{SWO+2}, 7864320
          s_mov_b32 s{SWO+3}, 0x20000
          s_mul_i32 s{sWO}, s{sHD}, 245760
          s_mul_i32 s{sT0}, s{sJ}, {128 if wx else 160}
          s_add_u32 s{sWO}, s{sWO}, s{sT0}""")
    if wx:
        A("; (column tiles 4j..4j+3 = one whole line per row; rows 48w..48w+47, swizzled like the projection tile)")
        A(f"""s_mul_i32 s{sT0}, s{sW}, {48*1280}
              s_add_u32 s{sWO}, s{sWO}, s{sT0}
              s_mul_i32 s{sWM}, s{sW}, 6144
              s_add_u32 s{sWM}, s{sWM}, {L_TW}
              v_lshrrev_b32 v2, 3, v0
              v_mul_u32_u24 v2, 1280, v2
              v_lshrrev_b32 v4, 4, v0
              v_lshlrev_b32 v4, 1, v4
              v_and_b32 v5, 7, v0
              v_xor_b32 v4, v4, v5
              v_lshl_add_u32 v{vWD}, v4, 4, v2""")
    else:
        A(f"""s_mul_i32 s{sT0}, s{sW}, {NL}
              s_add_u32 s{sT0}, s{sT0}, {30-4*NL}
              s_lshl_b32 s{sWM}, s{sT0}, 10
              s_add_u32 s{sWM}, s{sWM}, {L_TW}
              s_lshl_b32 s{sT0}, s{sT0}, 6
              s_mov_b32 s{sT1}, 0xcccd""")
        for k in range(NL):
            A(f"""v_add_u32 v2, s{sT0}, v0
                  v_mul_lo_u32 v4, v2, s{sT1}
                  v_lshrrev_b32 v4, 19, v4
                  v_mul_u32_u24 v5, 10, v4
                  v_sub_u32 v5, v2, v5
                  v_mul_u32_u24 v4, 1280, v4
                  v_lshl_add_u32 v{vWD+k}, v5, 4, v4
                  s_add_u32 s{sT0}, s{sT0}, 64""")
    stamp(2)
    if nb: spin_flag(vMPA, L_FLAG + 100, 2)
    else: A("s_barrier")
    stamp(3)

    PT_ = PT
    def mode(isv, PT=None):
        lax = isv or PLAX < 32
        if PT is None: PT = PT_ if (isv or PT_ < 32) else 0
        if lv:
            def nib(x):
                d = [int(c) for c in str(x)]; assert len(d) == 7
                return sum(v << (4 * i) for i, v in enumerate(d))
            A(f"""s_waitcnt lgkmcnt(0)
                  v_readfirstlane_b32 s{sREF}, v{vREF}
                  v_mov_b32 v2, s{sP}
                  s_sub_i32 s{sIT}, s{sP}, s{sREF}
                  s_max_i32 s{sIT}, s{sIT}, 0
                  s_min_i32 s{sIT}, s{sIT}, 6
                  s_lshl_b32 s{sT1}, s{sIT}, 2""")
            if rt: A(f"s_cmp_ge_u32 s{sP}, s54\ns_cselect_b32 s{sMODE}, s53, s52\ns_cmp_ge_u32 s{sP}, s56\ns_cselect_b32 s{sMODE}, s55, s{sMODE}\ns_lshr_b32 s{sMODE}, s{sMODE}, s{sT1}")
            elif PT and lv2: A(f"s_mov_b32 s{sMODE}, {nib(lv):#x}\ns_cmp_ge_u32 s{sP}, {PT}\ns_cselect_b32 s{sMODE}, {nib(lv2):#x}, s{sMODE}\ns_lshr_b32 s{sMODE}, s{sMODE}, s{sT1}")
            else: A(f"s_lshr_b32 s{sMODE}, {nib(lv):#x}, s{sT1}")
            A(f"s_and_b32 s{sMODE}, s{sMODE}, 15")
            if bm and PT:
                mask = sum(1 << (p - 32) for p in range(36, 60) if (bm >> (p % 8)) & 1)
                A(f"s_bitcmp1_b32 {mask:#x}, s{sP}\ns_addc_u32 s{sMODE}, s{sMODE}, 0\ns_min_u32 s{sMODE}, s{sMODE}, 9")
            A(f"""s_cmp_eq_u32 s{sREF}, 0
                  s_cselect_b32 s{sMODE}, {"s18" if (fb & 1) else df}, s{sMODE}""")
            if lax: A(f"s_cmp_ge_u32 s{sP}, {PLAX}\ns_cselect_b32 s{sMODE}, 10, s{sMODE}")
        elif ctl:
            A(f"""s_waitcnt lgkmcnt(0)
                  v_readfirstlane_b32 s{sREF}, v{vREF}
                  v_mov_b32 v2, s{sP}
                  s_sub_i32 s{sIT}, s{sP}, s{sREF}
                  {f"s_add_u32 s{sT1}, s{sP}, s{sW}" if md else ""}
                  {f"s_and_b32 s{sT1}, s{sT1}, {md}" if md else ""}
                  {f"s_cselect_b32 s{sT1}, {LA-1}, {LA}" if md else ""}
                  s_cmp_le_i32 s{sIT}, {f"s{sT1}" if md else LA}
                  s_cselect_b32 s{sMODE}, 2, 1
                  {f"s_cmp_ge_u32 s{sP}, {PT}" if PT else ""}
                  {f"s_cselect_b32 s{sT1}, {LB2}, {LB}" if PT else ""}
                  s_cmp_ge_i32 s{sIT}, {f"s{sT1}" if PT else LB}
                  s_cselect_b32 s{sMODE}, 0, s{sMODE}
                  s_cmp_eq_u32 s{sREF}, 0
                  s_cselect_b32 s{sMODE}, 1, s{sMODE}""")
            if lax: A(f"s_cmp_ge_u32 s{sP}, {PLAX}\ns_cselect_b32 s{sMODE}, 3, s{sMODE}")
            if wr and not light:
                A(f"""s_max_i32 s{sT1}, s{sIT}, 2
                      s_min_i32 s{sT1}, s{sT1}, 5
                      s_sub_u32 s{sT1}, s{sT1}, 2
                      s_lshl_b32 s{sT1}, s{sT1}, 3
                      s_lshl_b32 s{sT1}, 1, s{sT1}
                      s_cmp_eq_u32 s{sREF}, 0
                      s_cselect_b32 s{sT1}, 0, s{sT1}
                      s_cmp_ge_u32 s{sP}, {PLAX}
                      s_cselect_b32 s{sT1}, 0, s{sT1}
                      s_add_u32 s{sST+15}, s{sST+15}, s{sT1}""")
        else:
            A(f"v_mov_b32 v2, s{sP}\ns_cmp_ge_u32 s{sP}, {PLAX}\ns_cselect_b32 s{sMODE}, 3, 1")
    def mode2(g):
        A(f"""s_waitcnt lgkmcnt(0)
              v_readfirstlane_b32 s{sREF}, v{vREF}
              v_mov_b32 v2, s{sP}
              s_sub_i32 s{sIT}, s{sP}, s{sREF}
              s_lshl_b32 s{sIT}, s{sIT}, 1""")
        if adj: A(f"s_sub_i32 s{sIT}, s{sIT}, s{sMODE}")
        o = (g & 1) + (1 if adj else 0)
        A(f"""s_cmp_le_i32 s{sIT}, {A2 - o}
              s_cselect_b32 s{sMODE}, 2, 1
              s_cmp_ge_i32 s{sIT}, {B2 - o}
              s_cselect_b32 s{sMODE}, 0, s{sMODE}
              s_cmp_eq_u32 s{sREF}, 0
              s_cselect_b32 s{sMODE}, 1, s{sMODE}
              s_cmp_ge_u32 s{sP}, {PLAX}
              s_cselect_b32 s{sMODE}, 3, s{sMODE}""")
    def fetch(g, isv):
        lb = A.lab("w"); lc = A.lab("c"); ln = A.lab("n")
        late_mode = lm and isv and g >= 1 and not fine and not RL
        if fine: mode2(g)
        elif g % 2 == 0 and not late_mode: mode(isv)
        if isv and g >= 1:
            A(f"s_cmp_ge_u32 s{sP}, 60\ns_cbranch_scc0 {ln}\ns_waitcnt vmcnt({3*(NG-1-g) + (NL if g > GW else 0)})")
            def dma(k0, k1):
                for k in range(k0, k1):
                    if wx: A(f"s_add_u32 m0, s{sWM}, {1024*k}\ns_add_u32 s{sT1}, s{sWO}, {10240*k}\nbuffer_load_dwordx4 v{vWD}, {srd(SWO)}, s{sT1} offen nt lds")
                    else: A(f"s_add_u32 m0, s{sWM}, {1024*k}\ns_nop 0\nbuffer_load_dwordx4 v{vWD+k}, {srd(SWO)}, s{sWO} offen nt lds")
            if g == GW:
                if RL:
                    assert GW == 6
                    dma(0, NA)
                    A(f"s_mov_b32 s{sT2}, s{sREF}\ns_cmp_le_u32 s{sT2}, {RL}\ns_cbranch_scc1 {lc}")
                    dma(NA, NL)
                else:
                    dma(0, NL)
            if RL and g == 7:
                A(f"s_cmp_le_u32 s{sT2}, {RL}\ns_cbranch_scc0 {lc}\ns_waitcnt vmcnt({NA})")
                dma(NA, NL)
            if skp and g == 1: A(f"s_add_u32 s{sP}, s{sP}, 2\ns_branch L_skp\n{ln}:")
            else: A(f"s_branch {lc}\n{ln}:")
            if late_mode and g % 2 == 0: mode(PLAX < 60, PT)
        if not isv and g < NX:
            A(f"s_cmp_lt_u32 s{sP}, 4\ns_cbranch_scc1 {ln}")
        if lv:
            l2 = A.lab("x")
            lims = sorted(({int(c) for c in str(lv) + (str(lv2) if lv2 else "")} | {df} | ({6} if (bm and isv) else set())) - {9}, key=lambda v: (v != df, -v))
            for lim in lims:
                nx = A.lab("y")
                A(f"s_cmp_eq_u32 s{sMODE}, {lim}\ns_cbranch_scc0 {nx}")
                for j in range(3):
                    r = vRING + ((g + NG - 1) % NG) * 12 + j * 4
                    A(f"s_waitcnt vmcnt({lim})\nbuffer_load_dwordx4 v[{r}:{r+3}], v{vKV}, {srd(SK)}, s{sOFF} offen offset:{(128, 256, 1024)[lp]*j} nt")
                A(f"s_branch {l2}\n{nx}:")
            if (isv and (g == 0 or PLAX < 60)) or PLAX < 32: A(f"s_cmp_eq_u32 s{sMODE}, 10\ns_cbranch_scc1 {lb}")
            A(f"s_waitcnt vmcnt({XL})")
        else:
            if (isv and (g == 0 or PLAX < 60)) or PLAX < 32: A(f"s_cmp_ge_u32 s{sMODE}, 3\ns_cbranch_scc1 {lb}")
            if ctl: A(f"s_waitcnt vmcnt({XL})\ns_cmp_ge_u32 s{sMODE}, 2\ns_cbranch_scc1 {lb}")
            if be and isv and g == 7:
                A(f"s_bitcmp1_b32 s{sP}, 2\ns_cbranch_scc1 {lb}")
            if not XS: A(f"s_waitcnt vmcnt({XV if (isv and XV is not None) else X1})")
            if not XS and ctl and not (th and g % 2 == 1): A(f"s_cmp_ge_u32 s{sMODE}, 1\ns_cbranch_scc1 {lb}\ns_waitcnt vmcnt({XT})")
            if XS:
                l2 = A.lab("x"); l3 = A.lab("y")
                for lim, skip in ((XS, l3), (XU, None)):
                    if skip: A(f"s_cmp_ge_u32 s{sMODE}, 1\ns_cbranch_scc0 {skip}")
                    for j in range(3):
                        r = vRING + ((g + NG - 1) % NG) * 12 + j * 4
                        A(f"s_waitcnt vmcnt({lim})\nbuffer_load_dwordx4 v[{r}:{r+3}], v{vKV}, {srd(SK)}, s{sOFF} offen offset:{(128, 256, 1024)[lp]*j} nt")
                    A(f"s_branch {l2}")
                    if skip: A(f"{skip}:")
        A(f"{lb}:")
        issue(g + NG - 1)
        if XS or lv: A(f"{l2}:")
        A(f"s_add_u32 s{sI}, s{sI}, 1\ns_and_b32 s{sI}, s{sI}, 63")
        if not isv and g == 0:
            A(f"s_cselect_b32 s{SK}, s{SK}, s8\ns_cselect_b32 s{SK+1}, s{SK+1}, s9")
        A(f"v_readlane_b32 s{sOFF}, v{vTAB}, s{sI}")
        if not isv and g < NX: A(f"{ln}:")
        if g % 2 == 0: A(f"ds_write_b32 v{vFA}, v2 offset:{L_FLAG+16}")
        A(f"s_waitcnt vmcnt({3*(NG-1)})")
        A(f"{lc}:")
        if fine and g % 2 == 0: A(f"ds_read_b32 v{vREF}, v{vFA} offset:{L_FLAG}")
        if g % 2 == 1:
            if ctl: A(f"ds_read_b32 v{vREF}, v{vFA} offset:{L_FLAG}")
            A(f"s_add_u32 s{sP}, s{sP}, 1")
    def pstamps():
        if wr and not light:
            A("s_memrealtime s[100:101]\ns_waitcnt lgkmcnt(0)")
            for i in range(1, 8): A(f"s_cmp_eq_u32 s{sP}, {8*i}\ns_cselect_b32 s{sST+5+i}, s100, s{sST+5+i}")
            A(f"s_cmp_eq_u32 s{sP}, 4\ns_cselect_b32 s{sST+13}, s100, s{sST+13}")
            A(f"s_cmp_eq_u32 s{sP}, 60\ns_cselect_b32 s{sST+14}, s100, s{sST+14}")
    if sp: A(f"s_setprio {sp}")
    A(".p2align 3\nL_kbatch:")
    for j in range(3): A(f"ds_read_b128 v[{vQ+4*j}:{vQ+4*j+3}], v{vQA} offset:{L_Q+128*j}")
    A(f"v_add_u32 v{vQA}, 416, v{vQA}\ns_waitcnt lgkmcnt(0)")
    A("L_kloop:")
    for g in range(NG):
        fetch(g, False)
        base = vRING + g * 12
        for i in range(12): A(f"v_dot2c_f32_bf16 v{vS}, v{base+i}, v{vQ+i}")
        A(f"""s_nop 2
              v_add_f32_dpp v{vU}, v{vS}, v{vS} quad_perm:[1,0,3,2] row_mask:0xf bank_mask:0xf
              v_mov_b32 v{vS}, 0
              s_nop 0
              v_add_f32_dpp v{vU}, v{vU}, v{vU} quad_perm:[2,3,0,1] row_mask:0xf bank_mask:0xf
              s_nop 1
              v_add_f32_dpp v{vU}, v{vU}, v{vU} row_half_mirror row_mask:0xf bank_mask:0xf
              v_cvt_pk_bf16_f32 v{vU}, 0, v{vU}
              v_mul_f32 v{vU}, s{sSC}, v{vU}
              v_cvt_pk_bf16_f32 v{vU}, 0, v{vU}
              v_mul_f32 v{vU}, s{sL2E}, v{vU}
              ds_write_b32 v{vSCA}, v{vU} offset:{L_SC+4*g}""")
        if NX and g == 6:
            A(f"s_cmp_lt_u32 s{sP}, 4\ns_cbranch_scc0 L_nospare\ns_waitcnt vmcnt({3*(7-NX)})")
            for x in range(NX):
                for i in range(12): A(f"v_mov_b32 v{vRING + ((7 + x) % NG) * 12 + i}, v{vSPARE + 12 * x + i}")
            A("L_nospare:")
    A(f"v_add_u32 v{vSCA}, 256, v{vSCA}")
    pstamps()
    A(f"""s_bitcmp1_b32 s{sP}, 2
          s_cbranch_scc1 L_kloop
          s_cmp_lt_u32 s{sP}, 32
          s_cbranch_scc1 L_kbatch
          v_subrev_u32 v{vSCA}, 2048, v{vSCA}""")
    A(f""".p2align 3
          L_vbatch:
          ds_read_b128 v[{vM}:{vM+3}], v{vMPA} offset:{L_FLAG+32}
          s_waitcnt lgkmcnt(0)
          v_cmp_eq_u32 vcc, 0, v{vM+2}
          s_cbranch_vccnz L_vbatch
          v_add_u32 v{vMPA}, 16, v{vMPA}
          L_vloop:
          ds_read_b128 v[{vQ}:{vQ+3}], v{vSCA} offset:{L_SC}
          ds_read_b128 v[{vQ+4}:{vQ+7}], v{vSCA} offset:{L_SC+16}
          v_add_u32 v{vSCA}, 256, v{vSCA}
          s_waitcnt lgkmcnt(0)""")
    for g in range(NG):
        if skp and g == 5: A("L_skp:")
        if pa and g < 7: fetch(g, True)
        A(f"""v_sub_f32 v{vP}, v{vQ+g}, v{vM}
              v_sub_f32 v{vP}, v{vP}, v{vM+1}
              v_exp_f32 v{vP}, v{vP}
              s_nop 0
              v_cvt_pk_bf16_f32 v{vPL}, v{vP}, 0
              v_cvt_pk_bf16_f32 v{vPH}, 0, v{vP}""")
        if not (pa and g < 7): fetch(g, True)
        base = vRING + g * 12
        for i in range(12):
            A(f"v_dot2c_f32_bf16 v{vACC+2*i}, v{base+i}, v{vPL}")
            A(f"v_dot2c_f32_bf16 v{vACC+2*i+1}, v{base+i}, v{vPH}")
    pstamps()
    A(f"s_bitcmp1_b32 s{sP}, 2\ns_cbranch_scc1 L_vloop")
    if wr: A(f"s_mov_b32 s{sST+4}, s100\ns_mov_b32 s34, s100")
    A(f"s_cmp_ge_u32 s{sP}, 64")
    for j in range(3):
        for e in range(4): A(f"v_permlane32_swap_b32 v{vACC+8*j+e}, v{vACC+8*j+e+4}")
    for j in range(3):
        for e in (0, 2): A(f"v_pk_add_f32 v[{vACC+8*j+e}:{vACC+8*j+e+1}], v[{vACC+8*j+e}:{vACC+8*j+e+1}], v[{vACC+8*j+e+4}:{vACC+8*j+e+5}]")
    for j in range(3):
        for e in range(2): A(f"v_permlane16_swap_b32 v{vACC+8*j+e}, v{vACC+8*j+e+2}")
    for j in range(3): A(f"v_pk_add_f32 v[{vACC+8*j}:{vACC+8*j+1}], v[{vACC+8*j}:{vACC+8*j+1}], v[{vACC+8*j+2}:{vACC+8*j+3}]")
    for j in range(3):
        for e in range(2): A(f"v_add_f32_dpp v{vACC+8*j+e}, v{vACC+8*j+e}, v{vACC+8*j+e} row_ror:8 row_mask:0xf bank_mask:0xf")
        A(f"ds_write_b64 v{vAD}, v[{vACC+8*j}:{vACC+8*j+1}] offset:{L_PART+256*j}")
    if GW == 8:
        assert wx
        A("s_cbranch_scc0 L_vmore")
        for k in range(NL): A(f"s_add_u32 m0, s{sWM}, {1024*k}\ns_add_u32 s{sT1}, s{sWO}, {10240*k}\nbuffer_load_dwordx4 v{vWD}, {srd(SWO)}, s{sT1} offen nt lds")
        A("s_waitcnt lgkmcnt(0)\ns_branch L_vdone\nL_vmore:\ns_waitcnt lgkmcnt(0)")
    else:
        A("s_waitcnt lgkmcnt(0)\ns_cbranch_scc1 L_vdone")
    for i in range(24): A(f"v_mov_b32 v{vACC+i}, 0")
    A(f"v_add_u32 v{vAD}, 3072, v{vAD}\ns_branch L_vbatch")
    A("L_vdone:\ns_barrier")
    if sp: A("s_setprio 0")
    if wr: stamp(5, True)
    A(f"""v_lshrrev_b32 v1, 4, v0
          v_and_b32 v3, 3, v0
          v_lshrrev_b32 v2, 2, v0""")
    if wx:
        A(f"""v_bfe_u32 v4, v0, 3, 2
              v_xor_b32 v4, s{sW}, v4
              v_lshl_add_u32 v4, v2, 2, v4
              v_lshl_add_u32 v5, v4, 2, v3
              v_lshlrev_b32 v5, 3, v5
              v_add_u32 v5, {L_TW}, v5
              v_lshlrev_b32 v4, 3, v0
              v_add_u32 v4, {L_TW + 24576}, v4
              s_cmp_eq_u32 s{sW}, 4
              s_waitcnt vmcnt(0)
              s_barrier""")
        if wr: stamp(1)
        A("s_cbranch_scc1 L_b4")
        for s in range(6):
            for hf in range(2): A(f"ds_read_b64_tr_b16 v[{52+4*s+2*hf}:{53+4*s+2*hf}], v5 offset:{4096*s+2048*hf}")
        A(f"s_lshl2_add_u32 s{sOFF}, s{sJ}, s{sW}\ns_branch L_b5\nL_b4:")
        for s in range(6):
            for hf in range(2): A(f"ds_read_b64_tr_b16 v[{52+4*s+2*hf}:{53+4*s+2*hf}], v4 offset:{1024*s+512*hf}")
        A(f"s_add_u32 s{sOFF}, s{sJ}, 32\nL_b5:\ns_mul_i32 s{sT0}, s{sG}, 40\ns_add_u32 s{sOFF}, s{sOFF}, s{sT0}")
    else:
        A(f"""v_mul_u32_u24 v2, 160, v2
              v_lshl_add_u32 v5, v3, 3, v2
              s_lshl_b32 s{sT0}, s{sW}, 5
              s_add_u32 s{sT0}, s{sT0}, {L_TW}
              v_add_u32 v5, s{sT0}, v5
              s_waitcnt vmcnt(0)
              s_barrier""")
        if wr: stamp(1)
        for s in range(6):
            for hf in range(2): A(f"ds_read_b64_tr_b16 v[{52+4*s+2*hf}:{53+4*s+2*hf}], v5 offset:{5120*s+2560*hf}")
        A(f"s_mul_i32 s{sOFF}, s{sLID}, 5\ns_add_u32 s{sOFF}, s{sOFF}, s{sW}")
    A(f"""v_and_b32 v2, 15, v0
          v_mul_u32_u24 v4, 528, v2
          v_lshl_add_u32 v4, v1, 4, v4
          v_lshlrev_b32 v6, 2, v0
          s_movk_i32 s{sT1}, 15
          s_mov_b32 s{sM3}, 0
          s_mov_b32 s{sM3+1}, 0xffff0000
          s_lshl_b32 s{sOFF}, s{sOFF}, 8
          s_add_u32 s{sOFF}, s{sOFF}, {WS_SP}
          v_mov_b32 v13, {0 if ev else f"s{sTAG}"}
          {f"ds_read_b32 v13, v13 offset:{L_FLAG+96}" if ev else ""}
          s_waitcnt lgkmcnt(0)
          s_barrier""")
    if wr: stamp(2)
    for s in range(6): A(f"ds_read_b128 v[{16+4*s}:{19+4*s}], v4 offset:{L_A+64*s}")
    for s in range(6):
        A(f"s_waitcnt lgkmcnt({5-s})")
        A(f"v_mfma_f32_16x16x32_bf16 v[8:11], v[{16+4*s}:{19+4*s}], v[{52+4*s}:{55+4*s}], {'0' if s == 0 else 'v[8:11]'}")
    A(f"""s_nop 7
          v_add_f32 v9, v9, v10
          s_nop 1
          v_permlane32_swap_b32 v10, v9
          v_add_f32 v9, v9, v10
          s_nop 1
          v_permlane16_swap_b32 v10, v9
          v_add_f32 v9, v9, v10
          v_cndmask_b32 v12, v8, v9, s[{sM3}:{sM3+1}]
          v_bfi_b32 v12, s{sT1}, v13, v12
          buffer_store_dword v12, v6, {srd(SWS)}, s{sOFF} offen {POL[fs]}""")
    if wr:
        stamp(3)
        A("s_waitcnt vmcnt(0)")
        stamp(4)
    if b5: A("s_waitcnt vmcnt(0)\ns_barrier")
    if wr:
        if wst:
            A(f"""s_sleep 127
                  s_sleep 127
                  s_lshl_b32 s{sT0}, s2, 3
                  s_add_u32 s{sT0}, s{sT0}, s{sW}
                  s_lshl_b32 s{sT0}, s{sT0}, 4
                  s_add_u32 s{sT0}, s{sT0}, {STAMP_OFF + 0x20000}
                  v_mov_b32 v4, s{sST+11}
                  v_mov_b32 v5, s{sST+12}
                  v_mov_b32 v6, s{sST+14}
                  v_mov_b32 v7, s34
                  v_mov_b32 v2, 0
                  s_mov_b64 exec, 1
                  buffer_store_dwordx4 v[4:7], v2, {srd(SWS)}, s{sT0} offen
                  s_waitcnt vmcnt(0)""")
        if pst: A(f"s_mov_b32 s{sST+1}, s32\ns_mov_b32 s{sST+2}, s34\ns_mov_b32 s{sST+3}, s52\ns_mov_b32 s{sST+4}, s54")
        A(f"s_cmp_lg_u32 s{sW}, 0\ns_cbranch_scc1 L_end")
        A(f"s_lshl_b32 s{sT0}, s2, 8\ns_add_u32 s{sT0}, s{sT0}, {STAMP_OFF+128}")
        A("s_branch L_wrstamps")
    A("s_endpgm")

    if True:
        sK, sMY, sTK, sLB, sCU = sKH, sVAL, sOUTC, 16, 17
        TS = 1280
        A("""; pacing wave (speed only): board c (one line) holds 8 dwords; dword i is set by the workgroup whose check-point is
             ; other workgroups counts as one pair further behind.  Stream waves size their load window by their lead over it.""")
        A("L_pacer:")
        if ew:
            A("; the weights that are not fetched at the very end come in the first burst, ahead of K")
            for r, lo, n in ((SWO, 12, 7864320), (SW2, 18, 1966080)):
                A(f"s_mov_b32 s{r}, s{lo}\ns_mov_b32 s{r+1}, s{lo+1}\ns_mov_b32 s{r+2}, {n}\ns_mov_b32 s{r+3}, 0x20000")
            if not wx: dma_regs()
            if not wl: wo_dma(0)
            if ew == 2: A("s_barrier")
            A(f"s_cmp_lt_u32 s{sJ}, 6\ns_cbranch_scc1 L_pc_now2")
            if wx: dma_regs()
            w2_par(); w2_dma(0)
            A("L_pc_now2:")
        A(f"""{"" if ev else f"s_load_dword s{sTAG}, s[24:25], 0"}
              s_mov_b32 s{SWS}, s24
              s_mov_b32 s{SWS+1}, s25
              s_mov_b32 s{SWS+2}, {WSN}
              s_mov_b32 s{SWS+3}, 0x20000
              s_mov_b32 s{sK}, {((P0+DD_-slo+cm) & ~cm) - 1}
              s_lshr_b32 s{sMY}, s2, 3
              s_xor_b32 s{sT0}, s{sMY}, s2
              s_and_b32 s{sT1}, s{sT0}, 4
              s_lshl_b32 s{sT1}, s{sT1}, 3
              s_add_u32 s{sMY}, s{sMY}, s{sT1}
              s_mul_i32 s{sTK}, s{sMY}, {TS}
              s_add_u32 s{sTK}, s{sTK}, {WS_TK + (DD_ + 1 - 7) * TS}
              s_and_b32 s{sT0}, s{sT0}, 3
              s_cselect_b32 s{sMY}, 1000, s{sMY}
              s_cmp_ge_u32 s{sMY}, {NK}
              s_cselect_b32 s{sMY}, 1000, s{sMY}
              s_add_u32 s{sMY}, s{sMY}, {P0}
              s_add_u32 s{sT0}, s{sMY}, {DD_}
              v_sub_u32 v59, s{sT0}, v0
              v_cmp_le_u32 vcc, {PF}, v59
              v_mov_b32 v58, {cm2}
              s_nop 0
              v_cndmask_b32 v58, {cm}, v58, vcc
              v_and_b32 v59, v58, v59
              v_cmp_eq_u32 vcc, 0, v59
              s_and_b64 s[{sM1}:{sM1+1}], vcc, {((1 << (shi + 1)) - 1) & ~((1 << slo) - 1)}
              s_cselect_b32 s{sMY}, s{sMY}, 1000
              v_sub_u32 v59, 7, v0
              v_mul_u32_u24 v59, {TS}, v59
              v_lshl_add_u32 v59, v0, 2, v59
              s_getreg_b32 s{sLB}, hwreg(HW_REG_XCC_ID, 0, 3)
              s_lshl_b32 s{sLB}, s{sLB}, 13
              s_add_u32 s{sLB}, s{sLB}, {WS_LB}
              s_getreg_b32 s{sCU}, hwreg(HW_REG_HW_ID, 8, 1)
              s_lshl_b32 s{sCU}, s{sCU}, 6
              v_lshlrev_b32 v58, 6, v0
              {f"s_lshl_b32 s{sT2}, s{sG}, 13" if GT else ""}
              {f"s_add_u32 s{sT2}, s{sT2}, {WS_GB}" if GT else ""}
              {f"s_lshl_b32 s{sT0}, s{sJ}, 2" if GT else ""}
              {f"v_add_u32 v55, s{sT0}, v58" if GT else ""}
              v_mov_b32 v99, {L_FLAG}
              s_waitcnt lgkmcnt(0)""")
        if pr:
            A("; (speed only) first read of the lines our o records go to: L2 fills a line from memory before it serves a read")
            if sl:
                A(f"""v_lshlrev_b32 v2, 7, v0
                      s_mul_i32 s{sT0}, s{sG}, 768
                      s_mul_i32 s{sT1}, s{sJ}, 30720
                      s_add_u32 s{sT0}, s{sT0}, s{sT1}
                      s_add_u32 s{sT0}, s{sT0}, {WS_OP}
                      s_mov_b64 exec, 63""")
            else:
                A(f"""v_lshrrev_b32 v2, 3, v0
                      v_mul_u32_u24 v2, 6144, v2
                      v_and_b32 v3, 7, v0
                      v_lshl_add_u32 v2, v3, 7, v2
                      s_mul_i32 s{sT0}, s{sG}, 24576
                      s_mul_i32 s{sT1}, s{sJ}, 768
                      s_add_u32 s{sT0}, s{sT0}, s{sT1}
                      s_add_u32 s{sT0}, s{sT0}, {WS_OP}
                      s_mov_b64 exec, 0x3f3f3f3f""")
            A(f"buffer_load_dword v3, v2, {srd(SWS)}, s{sT0} offen sc1\ns_mov_b64 exec, -1")
        if zb:
            A("; zero the local boards (whole lines, so that L2 never has to fill them from memory)")
            A(f"""v_mov_b32 v8, 0
                  v_mov_b32 v9, 0
                  v_mov_b32 v10, 0
                  v_mov_b32 v11, 0
                  v_lshlrev_b32 v2, 4, v0
                  s_lshl_b32 s{sT0}, s{sLID}, 10
                  s_add_u32 s{sT0}, s{sT0}, {WS_GB}
                  s_and_b32 s{sT1}, s{sLID}, 31
                  s_lshl_b32 s{sT1}, s{sT1}, 8
                  s_add_u32 s{sT1}, s{sT1}, s{sLB}""")
            if GT: A(f"buffer_store_dwordx4 v[8:11], v2, {srd(SWS)}, s{sT0} offen")
            A(f"""s_mov_b64 exec, 0xffff
                  buffer_store_dwordx4 v[8:11], v2, {srd(SWS)}, s{sT1} offen
                  s_mov_b64 exec, -1""")
        sc = sT1 if smx else sT0
        if ev:
            if ew != 2: A("s_barrier")
            A("s_waitcnt vmcnt(0)")
            if nb:
                A("ds_write_b32 v99, v99 offset:104")
                spin_flag(99, 100, 57)
            else: A("s_barrier")
            A(f"ds_read_b32 v57, v99 offset:96\ns_waitcnt lgkmcnt(0)\nv_readfirstlane_b32 s{sTAG}, v57")
        else:
            mktag()
            A(f"v_mov_b32 v57, s{sTAG}\ns_barrier\ns_barrier")
        if tlb:
            A("; one workgroup per head touches the pages that come later, through the scalar path, so that their translations are ready")
            A(f"s_cmp_ge_u32 s{sJ}, {tlb}\ns_cbranch_scc1 L_pc_notlb")
            A(f"s_mul_i32 s{sT0}, s{sG}, 1572864\ns_add_u32 s{sT0}, s{sT0}, 786432")
            for base in (6, 8): A(f"s_add_u32 s{base}, s{base}, s{sT0}\ns_addc_u32 s{base+1}, s{base+1}, 0")
            for base in (6, 8):
                for b in range(4):
                    A(f"s_load_dword s32, s[{base}:{base+1}], -786432\ns_load_dword s32, s[{base}:{base+1}], {786432-64}")
                    if b < 3: A(f"s_add_u32 s{base}, s{base}, {BSTR}\ns_addc_u32 s{base+1}, s{base+1}, 0")
                    A("s_waitcnt lgkmcnt(0)")
            A(f"""s_mul_i32 s{sT0}, s{sG}, 245760
                  s_add_u32 s12, s12, s{sT0}
                  s_addc_u32 s13, s13, 0
                  s_load_dword s32, s[12:13], 0
                  s_load_dword s32, s[12:13], {245760-64}
                  s_load_dword s32, s[20:21], 0
                  s_add_u32 s6, s24, {WS_END-64}
                  s_addc_u32 s7, s25, 0
                  s_load_dword s32, s[6:7], 0
                  s_waitcnt lgkmcnt(0)
                  L_pc_notlb:""")
        A(f"""{"" if ctl else "s_branch L_vdone"}
              s_mov_b64 exec, 0xff
              L_pc_loop:
              ds_read_b128 v[8:11], v99 offset:16
              s_waitcnt lgkmcnt(0)
              v_min_u32 v12, v8, v9
              v_min3_u32 v12, v12, v10, v11
              v_max_u32 v8, v8, v9
              v_max3_u32 v8, v8, v10, v11
              v_readfirstlane_b32 s{sT0}, v12
              v_readfirstlane_b32 s{sT1}, v8
              s_cmp_lt_u32 s{sT0}, s{sMY}
              s_cbranch_scc1 L_pc_nopub
              s_mov_b32 s{sMY}, 1000
              s_mov_b64 exec, s[{sM1}:{sM1+1}]
              buffer_store_dword v57, v59, {srd(SWS)}, s{sTK} offen {POL[tp]}
              s_mov_b64 exec, 0xff
              L_pc_nopub:
              s_cmp_ge_u32 s{sT0}, {min(59, P0+NK+1)}
              s_cbranch_scc1 L_pc_out
              s_cmp_le_u32 s{sc}, s{sK}
              s_cbranch_scc1 L_pc_wait
              s_mov_b32 s{sK}, s{sc}
              s_cmp_ge_u32 s{sK}, {PF}
              s_cselect_b32 s{sT1}, {cm2}, {cm}
              s_andn2_b32 s{sT1}, s{sK}, s{sT1}
              s_sub_u32 s{sT1}, s{sT1}, {P0-1}
              s_mul_i32 s{sT1}, s{sT1}, {TS}
              s_add_u32 s{sT1}, s{sT1}, {WS_TK}
              s_load_dwordx8 s[{sH}:{sH+7}], s[24:25], s{sT1}
              s_lshl_b32 s{sT0}, s{sK}, 7
              s_add_u32 s{sT0}, s{sT0}, s{sLB}
              s_add_u32 s{sT1}, s{sT0}, s{sCU}
              s_load_dwordx2 s[12:13], s[24:25], s{sT1}""")
        if GT:
            A(f"""s_mov_b32 s{sIT}, 0
                  s_cmp_lt_u32 s{sK}, {PGB}
                  s_cbranch_scc1 L_pc_nog
                  s_lshl_b32 s{sT3}, s{sK}, 7
                  s_add_u32 s{sT3}, s{sT3}, s{sT2}
                  s_add_u32 s{sT1}, s{sT3}, s{sCU}
                  s_load_dwordx8 s[28:35], s[24:25], s{sT1}
                  s_mov_b64 exec, 3
                  buffer_store_dword v57, v55, {srd(SWS)}, s{sT3} offen
                  s_mov_b64 exec, 0xff
                  s_waitcnt lgkmcnt(0)""")
            for i in range(8): A(f"s_cmp_eq_u32 s{28+i}, s{sTAG}\ns_addc_u32 s{sIT}, s{sIT}, 0")
            A(f"s_cmp_ge_u32 s{sIT}, {GT}\ns_cselect_b32 s{sIT}, {GB}, 0\nL_pc_nog:")
        A(f"""s_sub_u32 s{sT1}, s{sK}, {DD_+1-slo}
              s_waitcnt lgkmcnt(0)""")
        for i in range(slo, shi + 1): A(f"s_cmp_eq_u32 s{sH+i}, s{sTAG}\ns_addc_u32 s{sT1}, s{sT1}, 0")
        A(f"""s_cmp_eq_u32 s13, s{sTAG}
              s_cselect_b32 s12, s12, 0
              s_cmp_gt_u32 s{sT1}, s12
              s_cselect_b32 s{sT1}, s{sT1}, s12
              v_mov_b32 v8, s{sT1}
              {f"v_add_u32 v8, s{sIT}, v8" if GT else ""}
              v_mov_b32 v9, v8
              ds_write2_b64 v99, v[8:9], v[8:9] offset0:0 offset1:1
              s_cbranch_scc0 L_pc_loop
              s_sub_u32 s{sT0}, s{sT0}, {7*128}
              s_mov_b64 exec, 0xffff
              v_mov_b32 v56, s{sT1}
              buffer_store_dwordx2 v[56:57], v58, {srd(SWS)}, s{sT0} offen
              s_mov_b64 exec, 0xff
              s_branch L_pc_loop
              L_pc_wait:
              s_sleep {slp}
              s_branch L_pc_loop
              L_pc_out:
              s_mov_b64 exec, -1""")
        if wl:
            assert ctl
            if wl == 2:
                A(f"""L_pc_w60:
                      ds_read_b128 v[8:11], v99 offset:16
                      s_waitcnt lgkmcnt(0)
                      v_min_u32 v8, v8, v9
                      v_min3_u32 v8, v8, v10, v11
                      v_cmp_gt_u32 vcc, 60, v8
                      s_cbranch_vccnz L_pc_w60""")
            wo_dma(0)
        A("s_branch L_vdone")

    A(".p2align 3\nL_aux:")
    if noaux:
        A(f"s_mov_b32 s{SWS}, s24\ns_mov_b32 s{SWS+1}, s25\ns_mov_b32 s{SWS+2}, 0x30000000\ns_mov_b32 s{SWS+3}, 0x20000")
        A(f"v_lshlrev_b32 v2, 2, v0\nv_lshrrev_b32 v3, 3, v0\ns_mov_b64 exec, 0xffffff\nds_write_b32 v2, v3 offset:{L_FLAG}\ns_mov_b64 exec, -1")
        A("s_waitcnt vmcnt(0) lgkmcnt(0)\ns_barrier\ns_barrier\ns_barrier\ns_barrier\ns_barrier\ns_barrier\ns_branch L_fin")
    A(f"""v_lshrrev_b32 v1, 4, v0
          v_and_b32 v2, 15, v0
          s_lshl_b32 s{sOUTC}, s{sOUTC}, 6""")
    for r, lo, n in ((SWS, 24, WSN), (SOUT, 20, 5120)) + (() if ew else ((SWO, 12, 7864320), (SW2, 18, 1966080))):
        A(f"s_mov_b32 s{r}, s{lo}\ns_mov_b32 s{r+1}, s{lo+1}\ns_mov_b32 s{r+2}, {n}\ns_mov_b32 s{r+3}, 0x20000")
    masks()
    A(f"""s_mov_b32 s{sL2E}, {f2u(1.4426950408889634):#x}
          v_mov_b32 v4, 0x3f803f80
          v_mov_b32 v76, 0
          v_mul_u32_u24 v70, 1312, v1
          v_lshl_add_u32 v70, v2, 4, v70
          s_mul_i32 s{sXCC}, s{sXCC}, 0x01010101
          s_and_b32 s{sT0}, s{sLID}, 0xe0
          s_add_u32 s22, s22, s{sT0}
          s_addc_u32 s23, s23, 0
          s_waitcnt vmcnt({(1 if pre else 0) + ev})""")
    stamp(1)
    A("; ---- LayerNorm: lane (b = l>>4, c = l&15) holds 40 elements of row b; every rounding of the bf16 reference is kept")
    for i in range(20): A(f"v_dot2c_f32_bf16 v76, v{X+i}, v4")
    for i in range(20): A(f"v_lshlrev_b32 v{F+2*i}, 16, v{X+i}\nv_and_b32 v{F+2*i+1}, 0xffff0000, v{X+i}")
    def red16(r):
        for m in ("quad_perm:[1,0,3,2]", "quad_perm:[2,3,0,1]", "row_half_mirror", "row_ror:8"):
            A(f"s_nop 1\nv_add_f32_dpp v{r}, v{r}, v{r} {m} row_mask:0xf bank_mask:0xf")
    if he == 2: A(f"s_load_dwordx8 s[{sH}:{sH+7}], s[22:23], 0")
    red16(76)
    A(f"v_mul_f32 v76, {f2u(1.0/640):#x}, v76")
    A("v_mov_b32 v72, 0\nv_mov_b32 v73, 0")
    for i in range(20):
        A(f"v_pk_add_f32 v[74:75], v[{F+2*i}:{F+2*i+1}], v[76:77] op_sel_hi:[1,0] neg_lo:[0,1] neg_hi:[0,1]")
        A("v_pk_fma_f32 v[72:73], v[74:75], v[74:75], v[72:73]")
    A("v_add_f32 v72, v72, v73")
    red16(72)
    A(f"""v_mul_f32 v72, {f2u(1.0/640):#x}, v72
          v_cvt_pk_bf16_f32 v72, 0, v72
          v_add_f32 v72, {f2u(1e-5):#x}, v72
          v_cvt_pk_bf16_f32 v72, 0, v72
          v_sqrt_f32 v72, v72
          v_cvt_pk_bf16_f32 v76, 0, v76
          v_cvt_pk_bf16_f32 v72, 0, v72
          v_rcp_f32 v72, v72""")
    if he == 1: A(f"s_load_dwordx8 s[{sH}:{sH+7}], s[22:23], 0")
    for i in range(20):
        A(f"v_pk_add_f32 v[{F+2*i}:{F+2*i+1}], v[{F+2*i}:{F+2*i+1}], v[76:77] op_sel_hi:[1,0] neg_lo:[0,1] neg_hi:[0,1]")
        A(f"v_cvt_pk_bf16_f32 v{X+i}, v{F+2*i}, v{F+2*i+1}")
    for i in range(20):
        A(f"v_lshlrev_b32 v{F+2*i}, 16, v{X+i}\nv_and_b32 v{F+2*i+1}, 0xffff0000, v{X+i}")
        A(f"v_pk_mul_f32 v[{F+2*i}:{F+2*i+1}], v[{F+2*i}:{F+2*i+1}], v[72:73] op_sel_hi:[1,0]")
        A(f"v_cvt_pk_bf16_f32 v{X+i}, v{F+2*i}, v{F+2*i+1}")
        if i % 4 == 3: A(f"ds_write_b128 v70, v[{X+i-3}:{X+i}] offset:{L_XN+256*(i//4)}")
    AF = 28
    A(f"""v_and_b32 v3, 3, v0
          v_mul_u32_u24 v71, 1312, v3
          v_lshl_add_u32 v71, v1, 3, v71
          s_mul_i32 s{sT0}, s{sKH}, 640
          v_add_u32 v71, s{sT0}, v71
          s_waitcnt {"vmcnt(0) " if ev else ""}lgkmcnt(0)""")
    if ev:
        A("; tag = hash of the first word found in ws, with low 4 bits that none of the 8 words found there has")
        A(f"v_readlane_b32 s{sTAG}, v100, 0")
        for e in range(4): A(f"v_and_b32 v{100+e}, 15, v{100+e}\nv_lshlrev_b32 v{100+e}, v{100+e}, 1")
        A("v_or3_b32 v100, v100, v101, v102\nv_or_b32 v100, v100, v103")
    mktag()
    if ev:
        A(f"""v_readlane_b32 s{sT0}, v100, 0
              v_readlane_b32 s{sT1}, v100, 1
              s_and_b32 s{sT2}, s{sTAG}, 15
              s_or_b32 s{sT0}, s{sT0}, s{sT1}
              s_mul_i32 s{sT0}, s{sT0}, 0x10001
              s_lshr_b32 s{sT0}, s{sT0}, s{sT2}
              s_ff0_i32_b32 s{sT0}, s{sT0}
              s_add_u32 s{sT0}, s{sT0}, s{sT2}
              s_and_b32 s{sT0}, s{sT0}, 15
              s_andn2_b32 s{sTAG}, s{sTAG}, 15
              s_or_b32 s{sTAG}, s{sTAG}, s{sT0}""")
    for s in range(10): A(f"ds_read2_b64 v[{AF+4*s}:{AF+4*s+3}], v71 offset0:{8*s} offset1:{8*s+4}")
    A(f"""v_lshrrev_b32 v68, 2, v0
          v_lshlrev_b32 v68, 7, v68
          v_lshl_add_u32 v68, v3, 3, v68
          v_bfe_u32 v69, v0, 3, 2""")
    for t in range(4): A(f"v_xor_b32 v72, {t}, v69\nv_lshl_add_u32 v{4+t}, v72, 5, v68")
    def hello():
        if not he: A(f"s_load_dwordx8 s[{sH}:{sH+7}], s[22:23], 0")
        A("s_waitcnt lgkmcnt(0)")
        for i in range(8): A(f"s_xor_b32 s{sH+i}, s{sH+i}, s{sXCC}")
        for i in range(1, 4): A(f"s_or_b64 s[{sH}:{sH+1}], s[{sH}:{sH+1}], s[{sH+2*i}:{sH+2*i+1}]")
        A(f"s_cselect_b32 s{sFAST}, 0, {min(fast, 1)}")
        if fast == 2: A(f"s_and_b32 s{sFAST}, s{sFAST}, s{sJ}")
    if nb: A("s_waitcnt lgkmcnt(0)"); flag_init()
    hello()
    A(f"""s_mul_i32 s{sT0}, s{sKH}, 30720
          s_add_u32 s{sT0}, s{sT0}, s{sOUTC}
          s_lshl_b32 s{sT0}, s{sT0}, 2
          s_add_u32 s{sOFF}, s{sT0}, {WS_QP}""")
    if qw:
        A("; (speed only) untagged first write of our slots: their lines are then in L2 and early polls hit")
        A(f"""s_min_u32 s{sT0}, s{sFAST}, s{sVAL}
              s_cmp_eq_u32 s{sT0}, 0
              s_cbranch_scc1 L_noqw
              v_not_b32 v24, s{sTAG}
              v_mul_u32_u24 v2, 30720, v1
              v_and_b32 v3, 15, v0
              v_lshl_add_u32 v2, v3, 4, v2
              v_mov_b32 v25, v24
              v_mov_b32 v26, v24
              v_mov_b32 v27, v24
              buffer_store_dwordx4 v[24:27], v2, {srd(SWS)}, s{sOFF} offen
              L_noqw:""")
    if stamps: A(f"s_mov_b32 s{sST+15}, s{sFAST}")
    stamp(2)
    A("s_barrier")
    stamp(3)
    D, BR = 8, 72
    def rd(hs):
        s, p = hs // 2, hs % 2
        for tt in range(2):
            t = 2 * p + tt; r = BR + (hs % 3) * 8 + tt * 4
            for hf in range(2):
                A(f"ds_read_b64_tr_b16 v[{r+2*hf}:{r+2*hf+1}], v{4+t} offset:{L_T2+4096*s+2048*hf}")
    rd(0); rd(1)
    for hs in range(20):
        s, p = hs // 2, hs % 2
        if hs + 2 < 20: rd(hs + 2)
        A(f"s_waitcnt lgkmcnt({4*min(2, 19-hs)})")
        for tt in range(2):
            t = 2 * p + tt; r = BR + (hs % 3) * 8 + tt * 4
            c = "0" if s == 0 else f"v[{D+4*t}:{D+4*t+3}]"
            A(f"v_mfma_f32_16x16x32_bf16 v[{D+4*t}:{D+4*t+3}], v[{AF+4*s}:{AF+4*s+3}], v[{r}:{r+3}], {c}")
    A(f"""s_nop 0
          s_and_b32 s{sT8}, s{sTAG}, 15
          v_lshlrev_b32 v70, 3, v0
          v_lshlrev_b32 v66, 2, v0
          v_mov_b32 v28, s{sTAG}
          v_mov_b32 v29, 15
          s_cmp_eq_u32 s{sVAL}, 0
          s_cbranch_scc1 L_nopub""")
    for r in range(4):
        o = 24 + r
        A(f"""v_cndmask_b32 v{o}, v{D+r}, v{D+4+r}, s[{sM1}:{sM1+1}]
              v_cndmask_b32 v{o}, v{o}, v{D+8+r}, s[{sM2}:{sM2+1}]
              v_cndmask_b32 v{o}, v{o}, v{D+12+r}, s[{sM3}:{sM3+1}]
              v_bfi_b32 v{o}, v29, v28, v{o}""")
    def qstores(pol):
        for r in range(4):
            A(f"""buffer_store_dword v{24+r}, v66, {srd(SWS)}, s{sOFF} offen {pol}
                  s_add_u32 s{sOFF}, s{sOFF}, 30720""")
    def rehello():
        l = A.lab("rh")
        A(f"""s_cmp_lg_u32 s{sFAST}, 0
              s_cbranch_scc1 {l}
              v_and_b32 v2, 7, v0
              v_lshlrev_b32 v2, 2, v2
              global_load_dword v3, v2, s[22:23] sc1
              s_waitcnt vmcnt(0)
              v_cmp_ne_u32 vcc, s{sXCC}, v3
              s_cmp_eq_u64 vcc, 0
              s_cselect_b32 s{sFAST}, {min(fast, 1)}, 0""")
        if fast == 2: A(f"s_and_b32 s{sFAST}, s{sFAST}, s{sJ}")
        A(f"{l}:")
    rehello()
    A(f"s_cmp_eq_u32 s{sFAST}, 0\ns_cbranch_scc1 L_qslow")
    qstores("")
    A("s_branch L_nopub\nL_qslow:")
    qstores("sc1")
    A("L_nopub:")
    stamp(4)

    def gather4(ldsoff, relu, sleep):
        GB = 100
        lp = A.lab("g4"); ex = A.lab("g4x")
        for i in range(1, 8): A(f"s_add_u32 s{sH+i}, s{sOFF}, {30720*i}")
        so = [sOFF] + [sH + i for i in range(1, 8)]
        A(f"s_mov_b32 exec_hi, 0xffff\ns_mov_b32 s{sSPIN}, {spin}\n{lp}:")
        for i in range(8): A(f"buffer_load_dwordx4 v[{GB+4*i}:{GB+4*i+3}], v94, {srd(SWS)}, s{so[i]} offen sc1")
        A(f"s_sub_u32 s{sSPIN}, s{sSPIN}, 1\ns_waitcnt vmcnt(0)")
        for e in range(32): A(f"v_xor_b32 v{GB+e}, s{sT8}, v{GB+e}")
        A(f"v_or_b32 v2, v{GB}, v{GB+1}")
        for e in range(2, 32, 2): A(f"v_or3_b32 v2, v2, v{GB+e}, v{GB+e+1}")
        A(f"""s_nop 1
              v_or_b32_dpp v2, v2, v2 quad_perm:[1,0,3,2] row_mask:0xf bank_mask:0xf
              s_cbranch_scc1 {ex}
              s_nop 0
              v_or_b32_dpp v2, v2, v2 quad_perm:[2,3,0,1] row_mask:0xf bank_mask:0xf
              v_and_b32 v2, 15, v2
              v_cmp_ne_u32 vcc, 0, v2
              s_and_b64 exec, exec, vcc""")
        if sleep: A(f"s_cbranch_execz {ex}\ns_sleep {sleep}\ns_branch {lp}")
        else: A(f"s_cbranch_execnz {lp}")
        A(f"{ex}:\ns_mov_b32 exec_lo, -1\ns_mov_b32 exec_hi, 0xffff")
        for b in range(4):
            r = GB + 4 * b
            for e in (0, 2): A(f"v_pk_add_f32 v[{r+e}:{r+e+1}], v[{r+e}:{r+e+1}], v[{r+16+e}:{r+17+e}]")
            if relu:
                for e in range(4): A(f"v_max_f32 v{r+e}, 0, v{r+e}")
            A(f"v_cvt_pk_bf16_f32 v{r}, v{r}, v{r+1}\nv_cvt_pk_bf16_f32 v{r+1}, v{r+2}, v{r+3}")
            A(f"ds_write_b64 v70, v[{r}:{r+1}] offset:{ldsoff+416*b}")
        A("s_mov_b64 exec, -1")

    A(f"""v_lshlrev_b32 v69, 5, v0
          v_lshlrev_b32 v94, 4, v0
          s_mul_i32 s{sOFF}, s{sHD}, 768
          s_add_u32 s{sOFF}, s{sOFF}, {WS_QP}
          s_nop 0""")
    if not nb: flag_init()
    A("ds_write_b32 v99, v28 offset:96")
    gather4(L_Q, False, 0)
    if nb: A("ds_write_b32 v99, v99 offset:100")
    else: A("s_waitcnt lgkmcnt(0)")
    stamp(5)
    if not nb: A("s_barrier")

    if not ew: dma_regs()
    A(f"""v_lshrrev_b32 v2, 2, v0
          v_mul_u32_u24 v2, 160, v2
          v_and_b32 v3, 3, v0
          v_lshl_add_u32 v65, v3, 3, v2
          v_add_u32 v65, {L_W2}, v65""")
    BW = 100
    def tile_frags():
        n = 0
        for t in range(5):
            for s in range(6):
                r = BW + (s * 5 + t) * 4
                for hf in range(2):
                    if n >= 15: A("s_waitcnt lgkmcnt(14)")
                    A(f"ds_read_b64_tr_b16 v[{r+2*hf}:{r+2*hf+1}], v65 offset:{5120*s+2560*hf+32*t}")
                    n += 1
        A("s_waitcnt lgkmcnt(0)")

    A(f"s_cmp_lt_u32 s{sJ}, 6\ns_cbranch_scc1 L_noffn2")
    w2_par()
    if not ew: w2_dma(tw)
    A(f"""s_mul_i32 s{sOFF}, s{sT3}, 768
          s_add_u32 s{sOFF}, s{sOFF}, {WS_QP + 6144*4}""")
    gather4(L_H, True, 4)
    A(f"""v_and_b32 v3, 3, v0
          v_mul_u32_u24 v71, 416, v3
          v_lshl_add_u32 v71, v1, 3, v71
          v_add_u32 v71, {L_H}, v71
          s_waitcnt vmcnt(0) lgkmcnt(0)""")
    for s in range(6): A(f"ds_read2_b64 v[{28+4*s}:{28+4*s+3}], v71 offset0:{8*s} offset1:{8*s+4}")
    A("s_waitcnt lgkmcnt(0)")
    if nb: spin_flag(99, 104, 2)
    tile_frags()
    for s in range(6):
        for t in range(5):
            c = "0" if s == 0 else f"v[{8+4*t}:{8+4*t+3}]"
            r = BW + (s * 5 + t) * 4
            A(f"v_mfma_f32_16x16x32_bf16 v[{8+4*t}:{8+4*t+3}], v[{28+4*s}:{28+4*s+3}], v[{r}:{r+3}], {c}")
    A(f"""s_mul_i32 s{sOFF}, s{sT3}, 10240
          s_mul_i32 s{sT0}, s{sT2}, 1280
          s_add_u32 s{sOFF}, s{sOFF}, s{sT0}
          s_add_u32 s{sOFF}, s{sOFF}, {WS_YP}
          v_mov_b32 v3, 15
          s_nop 7""")
    for t in range(5):
        o = 28 + 2 * t
        A(f"""v_cndmask_b32 v{o}, v{8+4*t}, v{9+4*t}, s[{sM1}:{sM1+1}]
              v_cndmask_b32 v{o}, v{o}, v{10+4*t}, s[{sM2}:{sM2+1}]
              v_cndmask_b32 v{o}, v{o}, v{11+4*t}, s[{sM3}:{sM3+1}]
              v_bfi_b32 v{o}, v3, s{sTAG}, v{o}
              buffer_store_dword v{o}, v66, {srd(SWS)}, s{sOFF} offen offset:{256*t} sc1""")
    A("L_noffn2:")

    def red4():
        A(f"""s_nop 1
              v_permlane32_swap_b32 v8, v10
              v_permlane32_swap_b32 v9, v11
              v_add_f32 v8, v8, v10
              v_add_f32 v9, v9, v11
              s_nop 1
              v_permlane16_swap_b32 v8, v9
              v_add_f32 v8, v8, v9
              s_nop 1
              v_add_f32_dpp v8, v8, v8 row_ror:8 row_mask:0xf bank_mask:0xf
              s_nop 1
              v_add_f32_dpp v8, v8, v8 row_ror:4 row_mask:0xf bank_mask:0xf""")
    def fpoll(loads, sleep):
        lp = A.lab("fp"); ex = A.lab("fpx")
        n = len(loads)
        A(f"s_mov_b32 s{sSPIN}, {spin}\n{lp}:")
        for l in loads: A(l)
        A(f"s_sub_u32 s{sSPIN}, s{sSPIN}, 1\ns_waitcnt vmcnt(0)")
        if n == 1:
            for e in range(4): A(f"v_xor_b32 v{8+e}, s{sT8}, v{12+e}")
            A("v_or3_b32 v2, v8, v9, v10\nv_or_b32 v2, v2, v11\ns_nop 1")
        else:
            for e in range(8): A(f"v_xor_b32 v{12+e}, s{sT8}, v{12+e}")
            A("""v_or3_b32 v2, v12, v13, v14
                 v_or3_b32 v2, v2, v15, v16
                 v_or3_b32 v2, v2, v17, v18
                 v_or_b32 v2, v2, v19
                 v_pk_add_f32 v[8:9], v[12:13], v[16:17]
                 v_pk_add_f32 v[10:11], v[14:15], v[18:19]""")
        A(f"""v_or_b32_dpp v2, v2, v2 quad_perm:[1,0,3,2] row_mask:0xf bank_mask:0xf
              s_cbranch_scc1 {ex}
              s_nop 0
              v_or_b32_dpp v2, v2, v2 quad_perm:[2,3,0,1] row_mask:0xf bank_mask:0xf
              v_and_b32 v2, 15, v2
              v_cmp_ne_u32 vcc, 0, v2
              s_and_b64 exec, exec, vcc""")
        if sleep: A(f"s_cbranch_execz {ex}\ns_sleep {sleep}\ns_branch {lp}")
        else: A(f"s_cbranch_execnz {lp}")
        A(f"{ex}:")
    sR4 = sCOLB
    sTHR, sOPW, sOPR = 18, sT2, sT3
    A(f"""s_mul_i32 s{sT0}, s{sG}, 5
          s_add_u32 s{sT0}, s{sT0}, s{sJ}
          s_lshl_b32 s{sR4}, s{sT0}, 6
          s_and_b32 s{sT1}, s{sT0}, 3
          s_mul_i32 s{sT1}, s{sT1}, 40
          s_lshr_b32 s{sT0}, s{sT0}, 2
          s_add_u32 s{sT0}, s{sT0}, s{sT1}
          v_lshrrev_b32 v2, 3, v0
          v_lshlrev_b32 v89, 4, v2
          v_lshrrev_b32 v2, 2, v0
          v_mul_u32_u24 v92, 10240, v2
          v_and_b32 v3, 3, v0
          v_lshl_add_u32 v92, v3, 4, v92
          v_lshl_add_u32 v93, v3, 2, v1
          v_lshlrev_b32 v93, 1, v93
          s_lshl_b32 s{sT0}, s{sT0}, 5
          v_add_u32 v93, s{sT0}, v93
          v_mov_b32 v87, v94
          v_lshlrev_b32 v88, 7, v1
          v_mov_b32 v41, s{sTAG}
          v_mov_b32 v43, s{sTAG}""")
    def wait_prog():
        l = A.lab("wp"); x = A.lab("wpx")
        A(f"""{l}:
              ds_read_b128 v[8:11], v99 offset:16
              s_waitcnt lgkmcnt(0)
              v_min_u32 v8, v8, v9
              v_min3_u32 v8, v8, v10, v11
              v_cmp_le_u32 vcc, s{sTHR}, v8
              s_cbranch_vccnz {x}
              s_sleep 4
              s_branch {l}
              {x}:""")
    def store2(ins):
        a = A.lab("sl"); b = A.lab("sd")
        A(f"s_cbranch_scc1 {a}\n{ins}\ns_branch {b}\n{a}:\n{ins} sc1\n{b}:")
    A(f"s_cmp_ge_u32 s{sJ}, 5\ns_cbranch_scc1 L_nogate\ns_mov_b32 s{sTHR}, {PG}")
    wait_prog()
    A(f"""buffer_load_ushort v91, v93, {srd(SX)}, 0 offen
          s_add_u32 s{sOFF}, s{sR4}, {WS_YP}""")
    A("v_mov_b32 v8, 0\nv_mov_b32 v9, 0\nv_mov_b32 v10, 0\nv_mov_b32 v11, 0\ns_mov_b32 exec_hi, 0")
    fpoll([f"buffer_load_dwordx4 v[12:15], v92, {srd(SWS)}, s{sOFF} offen sc1"], 8)
    A("s_mov_b64 exec, -1")
    red4()
    A(f"""v_cvt_pk_bf16_f32 v8, 0, v8
          v_mul_f32 v9, s{sL2E}, v8
          v_exp_f32 v9, -v9
          v_lshlrev_b32 v91, 16, v91
          v_add_f32 v9, 1.0, v9
          v_rcp_f32 v9, v9
          s_nop 0
          v_mul_f32 v8, v8, v9
          v_cvt_pk_bf16_f32 v90, 0, v8
          L_nogate:""")
    stamp(6)
    rehello()
    A(f"""s_mov_b32 s{sTHR}, 24
          s_lshl_b32 s{sOPR}, s{sG}, 9
          s_add_u32 s{sOPR}, s{sOPR}, {WS_ML}
          s_lshl_b32 s{sOPW}, s{sJ}, 4
          s_add_u32 s{sOPW}, s{sOPW}, s{sOPR}
          s_mov_b32 s{sM1}, 0x00010001
          s_mov_b32 s{sM1+1}, 0x00000001
          s_mov_b32 s{sM2}, 0x00ffffff
          s_mov_b32 s{sM2+1}, 0
          L_stats:""")
    wait_prog()
    for w in range(4):
        for h in range(2): A(f"ds_read_b128 v[{8+8*w+4*h}:{11+8*w+4*h}], v69 offset:{L_SC+2048*w+16*h}")
    A("s_waitcnt lgkmcnt(0)\nv_max_f32 v40, v8, v9")
    for i in range(1, 16): A(f"v_max3_f32 v40, v40, v{8+2*i}, v{9+2*i}")
    R16 = ("quad_perm:[1,0,3,2]", "quad_perm:[2,3,0,1]", "row_half_mirror", "row_ror:8")
    for m in R16: A(f"s_nop 1\nv_max_f32_dpp v40, v40, v40 {m} row_mask:0xf bank_mask:0xf")
    for i in range(32): A(f"v_sub_f32 v{8+i}, v{8+i}, v40")
    for i in range(32): A(f"v_exp_f32 v{8+i}, v{8+i}")
    A("v_add_f32 v42, v8, v9")
    for i in range(2, 32): A(f"v_add_f32 v42, v42, v{8+i}")
    red16(42)
    A(f"s_mov_b64 exec, s[{sM1}:{sM1+1}]\ns_cmp_eq_u32 s{sFAST}, 0")
    store2(f"buffer_store_dwordx4 v[40:43], v88, {srd(SWS)}, s{sOPW} offen")
    A(f"s_mov_b64 exec, -1\ns_add_u32 s{sTHR}, s{sTHR}, 3")
    wait_prog()
    A(f"s_mov_b64 exec, s[{sM2}:{sM2+1}]")
    poll([f"buffer_load_dwordx4 v[44:47], v94, {srd(SWS)}, s{sOPR} offen sc1"], [45, 47], 4)
    A("s_mov_b64 exec, -1")
    R8 = R16[:3]
    A(f"v_max_f32_dpp v48, v44, v44 {R8[0]} row_mask:0xf bank_mask:0xf")
    for m in R8[1:]: A(f"s_nop 1\nv_max_f32_dpp v48, v48, v48 {m} row_mask:0xf bank_mask:0xf")
    A("v_sub_f32 v44, v44, v48\nv_exp_f32 v44, v44\ns_nop 0\nv_mul_f32 v44, v44, v46")
    for m in R8: A(f"s_nop 1\nv_add_f32_dpp v44, v44, v44 {m} row_mask:0xf bank_mask:0xf")
    A(f"""v_log_f32 v49, v44
          v_mov_b32 v50, 1
          s_mov_b64 exec, s[{sM2}:{sM2+1}]
          ds_write_b64 v89, v[48:49] offset:{L_FLAG+32}
          ds_write_b32 v89, v50 offset:{L_FLAG+40}
          s_mov_b64 exec, -1
          s_mov_b32 s{sM1}, 0
          s_mov_b32 s{sM1+1}, 0x00010000
          s_mov_b32 s{sM2}, 0xff000000
          s_add_u32 s{sTHR}, s{sTHR}, 5
          s_cmp_lt_u32 s{sTHR}, 40
          s_cbranch_scc1 L_stats""")
    if not ew: wo_dma(tw)
    if sl:
        A("""; o records: record j = row j of one of two slots.  Batches 0, 2 reuse this head's q rows (everybody has read them: all 8
             ; every neighbour sent after gathering batch b; it carries a different tag.""")
    A(f"""s_mul_i32 s{sOPR}, s{sG}, {768 if sl else 24576}
          s_add_u32 s{sOPR}, s{sOPR}, {WS_QP if sl else WS_OP}
          s_mul_i32 s{sOPW}, s{sJ}, {30720 if sl else 768}
          s_add_u32 s{sOPW}, s{sOPW}, s{sOPR}
          {f"s_mov_b32 s{sTG}, s{sTAG}" if sl else ""}
          {f"s_mov_b32 s16, {SLB}" if sl else ""}
          v_lshrrev_b32 v2, 3, v0
          v_and_b32 v3, 7, v0
          v_mul_u32_u24 v85, {30720 if sl else 768}, v2
          v_lshl_add_u32 v85, v3, 4, v85
          v_and_b32 v3, 3, v0
          v_bfe_u32 v4, v0, 2, 1
          v_lshl_add_u32 v3, v3, 1, v4
          v_lshl_add_u32 v84, v2, 3, v3
          v_lshlrev_b32 v84, 3, v84
          v_lshl_add_u32 v2, v1, 1, v2
          v_mul_u32_u24 v86, 528, v2
          v_lshl_add_u32 v86, v3, 3, v86
          v_add_u32 v86, {L_A + 528}, v86""")
    if pt3 == 2:
        A("; (speed only) untagged first write of our last record: its lines are then in L2 and the neighbours' polls hit")
        A(f"""s_cmp_eq_u32 s{sFAST}, 0
              s_cbranch_scc1 L_batch
              s_add_u32 s{sT1}, s{sOPW}, {3*6144}
              v_not_b32 v45, v41
              v_not_b32 v47, v41
              s_mov_b32 exec_hi, 0xffff
              buffer_store_dwordx4 v[44:47], v94, {srd(SWS)}, s{sT1} offen
              s_mov_b32 exec_hi, -1""")
    if pt3 == 1:
        A("; (first touch of the lines of our last record: brings them into L2 so that the neighbours' polls hit)")
        A(f"""s_add_u32 s{sT1}, s{sOPW}, {3*6144}
              v_lshlrev_b32 v2, 7, v0
              s_mov_b64 exec, 63
              buffer_load_dword v98, v2, {srd(SWS)}, s{sT1} offen sc1
              s_mov_b64 exec, -1""")
    A("L_batch:")
    wait_prog()
    A("L_publish:\ns_mov_b32 exec_hi, 0xffff")
    for w in range(4): A(f"ds_read_b128 v[{8+4*w}:{11+4*w}], v87 offset:{L_PART+768*w}")
    A(f"""s_cmp_eq_u32 s{sFAST}, 0
          s_waitcnt lgkmcnt(2)
          v_pk_add_f32 v[8:9], v[8:9], v[12:13]
          v_pk_add_f32 v[10:11], v[10:11], v[14:15]
          s_waitcnt lgkmcnt(0)
          v_pk_add_f32 v[16:17], v[16:17], v[20:21]
          v_pk_add_f32 v[18:19], v[18:19], v[22:23]
          v_pk_add_f32 v[8:9], v[8:9], v[16:17]
          v_pk_add_f32 v[10:11], v[10:11], v[18:19]
          v_cvt_pk_bf16_f32 v40, v8, v9
          v_cvt_pk_bf16_f32 v42, v10, v11""")
    store2(f"buffer_store_dwordx4 v[40:43], v94, {srd(SWS)}, s{sOPW} offen")
    A(f"""s_mov_b32 exec_hi, -1
          s_cmp_eq_u32 s{sTHR}, 64
          s_cbranch_scc1 L_last
          s_add_u32 s{sOPW}, s{sOPW}, {'s16' if sl else 6144}
          v_add_u32 v87, 3072, v87
          s_add_u32 s{sTHR}, s{sTHR}, {GO}""")
    wait_prog()
    if sl:
        for r in range(1, 8): A(f"s_add_u32 s{sH+r}, s{sOPR}, {30720*r}")
        A("s_mov_b32 exec_hi, 0xffff")
    else: A(f"s_add_u32 s{sT0}, s{sOPR}, 3072\ns_add_u32 s{sT1}, s{sOPR}, 6144\ns_mov_b32 exec_hi, 0xffff")
    if not pt3:
        A("; (first touch of the next batch's lines: brings them into L2 so that its polls hit)")
        A(f"v_lshlrev_b32 v2, 7, v0\nbuffer_load_dword v98, v2, {srd(SWS)}, s{sT1} offen sc1")
    ld = []; tg = []
    for r in range(8):
        if sl: ld.append(f"buffer_load_dwordx4 v[{8+4*r}:{11+4*r}], v94, {srd(SWS)}, s{sH+r if r else sOPR} offen offset:0 sc1")
        else: ld.append(f"buffer_load_dwordx4 v[{8+4*r}:{11+4*r}], v94, {srd(SWS)}, s{sOPR if r < 4 else sT0} offen offset:{768*(r%4)} sc1")
        tg += [9 + 4 * r, 11 + 4 * r]
    poll(ld, tg, 2, None, sTG)
    A("s_mov_b32 exec_lo, -1\ns_mov_b32 exec_hi, 0xffff")
    for r in range(8):
        a = 8 + 4 * r
        A(f"v_and_b32 v{a+1}, 0xffff0000, v{a}\nv_lshlrev_b32 v{a}, 16, v{a}\nv_and_b32 v{a+3}, 0xffff0000, v{a+2}\nv_lshlrev_b32 v{a+2}, 16, v{a+2}")
        if r: A(f"v_pk_add_f32 v[8:9], v[8:9], v[{a}:{a+1}]\nv_pk_add_f32 v[10:11], v[10:11], v[{a+2}:{a+3}]")
    A(f"""v_cvt_pk_bf16_f32 v48, v8, v9
          v_cvt_pk_bf16_f32 v49, v10, v11
          ds_write_b64 v84, v[48:49] offset:{L_A}
          s_mov_b32 exec_hi, -1
          v_add_u32 v84, 2112, v84
          s_add_u32 s{sOPR}, s{sOPR}, {'s16' if sl else 6144}
          s_add_u32 s{sTHR}, s{sTHR}, {8-GO}""")
    if sl:
        A(f"""s_sub_u32 s16, 0, s16
              s_xor_b32 s{sT0}, s{sTAG}, 16
              s_cmp_ge_u32 s{sTHR}, 56
              s_cselect_b32 s{sTG}, s{sT0}, s{sTAG}
              v_mov_b32 v41, s{sTG}
              v_mov_b32 v43, s{sTG}""")
    if wb:
        A(f"""s_and_b32 s{sT0}, s{sLID}, 31
              s_lshl_b32 s{sT0}, s{sT0}, 8
              s_or_b32 s{sT0}, s{sT0}, s{sTHR}
              s_cmp_lg_u32 s{sT0}, {wb + (5 << 8)}
              s_cbranch_scc1 L_nowb
              buffer_wbl2 sc1
              L_nowb:""")
    A(f"""s_cmp_lt_u32 s{sTHR}, 64
          s_cbranch_scc1 L_batch
          s_add_u32 s{sOFF}, s{sR4}, {WS_SP}""")
    A(f"s_add_u32 s{sH+1}, s{sOFF}, 163840")
    A("s_waitcnt lgkmcnt(0)")
    stamp(7)
    A("s_barrier")
    stamp(8)
    A("s_branch L_publish\nL_last:")
    stamp(9)
    def w1(k):
        for i in range(6): A(f"ds_write2_b32 v86, v{100+24*k+4*i}, v{102+24*k+4*i} offset0:{16*i} offset1:{16*i+1}")
    ppoll(N1, lambda k: [f"buffer_load_dwordx4 v[{100+24*k+4*i}:{103+24*k+4*i}], v85, {srd(SWS)}, s{sOPR} offen offset:{128*i} sc1" for i in range(6)],
          lambda k: [100 + 24 * k + 2 * i + 1 for i in range(12)], w1, lambda: A("s_barrier"), gap1, sTG)
    A("s_mov_b64 exec, -1")
    stamp(10)
    A("s_waitcnt lgkmcnt(0)\ns_barrier")
    if xw:
        A("; (speed only) hold the polls back until the four heads next to ours are through as well")
        A(f"""s_cmp_ge_u32 s{sJ}, 5
              s_cbranch_scc1 L_noxw
              v_lshrrev_b32 v2, 3, v0
              v_mul_u32_u24 v3, {24576 - 8*768}, v2
              v_mul_u32_u24 v2, 768, v0
              v_add_u32 v3, v3, v2
              s_and_b32 s{sT0}, s{sG}, 28
              s_mul_i32 s{sT0}, s{sT0}, 24576
              s_add_u32 s{sT0}, s{sT0}, {WS_OP + 3*6144}
              s_mov_b32 exec_hi, 0""")
        poll([f"buffer_load_dword v4, v3, {srd(SWS)}, s{sT0} offen offset:764 sc1"], [4], xw - 1)
        A("s_mov_b64 exec, -1\nL_noxw:")
    if b5 and stamps: A("s_barrier")
    A(f"s_cmp_ge_u32 s{sJ}, {0 if nor4 else 5}\ns_cbranch_scc1 L_fin")
    if b5 and not stamps: A("s_barrier")
    if d2: A(f"s_sleep {d2}")
    stamp(11)
    if at >= 2:
        A(f"""v_lshrrev_b32 v2, 3, v0
              v_mul_u32_u24 v3, 10240, v2
              v_and_b32 v2, 7, v0
              v_lshl_add_u32 v3, v2, 3, v3
              s_mov_b32 s{sSPIN}, {spin}""")
        for i in range(4): A(f"s_add_u32 s{28+i}, s{sOFF}, {81920*i}\ns_mov_b64 s[{4+2*i}:{5+2*i}], -1")
        def iss(k):
            r = 44 + 8 * k
            for i in range(4):
                A(f"""s_or_b64 exec, s[{4+2*i}:{5+2*i}], {at1}
                      v_mov_b32 v{r+2*i}, 0
                      v_mov_b32 v{r+1+2*i}, 0
                      buffer_atomic_or_x2 v[{r+2*i}:{r+1+2*i}], v3, {srd(SWS)}, s{28+i} offen sc0 sc1""")
        for k in range(at):
            iss(k)
            if k < at - 1: A(f"s_sleep {gap2+1}")
        A("L_at:")
        for k in range(at):
            r = 44 + 8 * k
            A(f"s_waitcnt vmcnt({4*(at-1)})")
            for i in range(4):
                A(f"""s_mov_b64 exec, s[{4+2*i}:{5+2*i}]
                      v_xor_b32 v{12+2*i}, s{sT8}, v{r+2*i}
                      v_xor_b32 v{13+2*i}, s{sT8}, v{r+1+2*i}
                      v_bitop3_b32 v2, v{12+2*i}, v{13+2*i}, 15 bitop3:0xa8
                      v_cmp_ne_u32 s[{4+2*i}:{5+2*i}], 0, v2""")
            A(f"""s_or_b64 vcc, s[4:5], s[6:7]
                  s_or_b64 vcc, vcc, s[8:9]
                  s_or_b64 vcc, vcc, s[10:11]
                  s_cbranch_scc0 L_atx""")
            if gap2: A(f"s_sleep {gap2}")
            iss(k)
        A(f"""s_sub_u32 s{sSPIN}, s{sSPIN}, 1
              s_cbranch_scc0 L_at
              L_atx:
              s_mov_b64 exec, -1
              v_pk_add_f32 v[8:9], v[12:13], v[16:17]
              v_pk_add_f32 v[10:11], v[14:15], v[18:19]""")
    elif at:
        A(f"""v_lshrrev_b32 v2, 3, v0
              v_mul_u32_u24 v3, 10240, v2
              v_and_b32 v2, 7, v0
              v_lshl_add_u32 v3, v2, 3, v3
              s_mov_b32 s{sSPIN}, {spin}""")
        for i in range(4): A(f"s_add_u32 s{28+i}, s{sOFF}, {81920*i}\ns_mov_b64 s[{4+2*i}:{5+2*i}], -1")
        A("L_at:")
        for i in range(4):
            l = A.lab("at")
            A(f"""s_mov_b64 exec, s[{4+2*i}:{5+2*i}]
                  s_cbranch_execz {l}
                  v_mov_b32 v{12+2*i}, 0
                  v_mov_b32 v{13+2*i}, 0
                  buffer_atomic_or_x2 v[{12+2*i}:{13+2*i}], v3, {srd(SWS)}, s{28+i} offen sc0 sc1
                  {l}:""")
        A(f"s_mov_b64 exec, -1\ns_sub_u32 s{sSPIN}, s{sSPIN}, 1\ns_waitcnt vmcnt(0)\ns_cbranch_scc1 L_atx")
        for i in range(4):
            A(f"""v_xor_b32 v2, s{sT8}, v{12+2*i}
                  v_bitop3_b32 v2, v2, v{13+2*i}, s{sT8} bitop3:0xf6
                  v_and_b32 v2, 15, v2
                  v_cmp_ne_u32 s[{4+2*i}:{5+2*i}], 0, v2""")
        A(f"""s_or_b64 vcc, s[4:5], s[6:7]
              s_or_b64 vcc, vcc, s[8:9]
              s_or_b64 vcc, vcc, s[10:11]
              s_cbranch_scc0 L_atx
              {f"s_sleep {gap2}" if gap2 else ""}
              s_branch L_at
              L_atx:
              v_pk_add_f32 v[8:9], v[12:13], v[16:17]
              v_pk_add_f32 v[10:11], v[14:15], v[18:19]""")
    elif N2 == 1:
        fpoll([f"buffer_load_dwordx4 v[{12+4*i}:{15+4*i}], v92, {srd(SWS)}, s{(sOFF, sH+1)[i]} offen {POL[fl]}" for i in range(2)], gap2)
    else:
        def lds2(k):
            for i in range(2): A(f"buffer_load_dwordx4 v[{12+8*k+4*i}:{15+8*k+4*i}], v92, {srd(SWS)}, s{(sOFF, sH+1)[i]} offen {POL[fl]}")
        A(f"s_mov_b32 s{sSPIN}, {spin}")
        for k in range(N2):
            lds2(k)
            if k < N2 - 1: A(f"s_sleep {max(gap2, 1)}")
        A("L_f2:")
        for k in range(N2):
            r = 12 + 8 * k
            A(f"s_waitcnt vmcnt({2*(N2-1)})")
            for e in range(8): A(f"v_xor_b32 v{r+e}, s{sT8}, v{r+e}")
            A(f"""v_or3_b32 v2, v{r}, v{r+1}, v{r+2}
                  v_or3_b32 v2, v2, v{r+3}, v{r+4}
                  v_or3_b32 v2, v2, v{r+5}, v{r+6}
                  v_or_b32 v2, v2, v{r+7}
                  v_pk_add_f32 v[8:9], v[{r}:{r+1}], v[{r+4}:{r+5}]
                  v_pk_add_f32 v[10:11], v[{r+2}:{r+3}], v[{r+6}:{r+7}]
                  v_or_b32_dpp v2, v2, v2 quad_perm:[1,0,3,2] row_mask:0xf bank_mask:0xf
                  s_nop 1
                  v_or_b32_dpp v2, v2, v2 quad_perm:[2,3,0,1] row_mask:0xf bank_mask:0xf
                  v_and_b32 v2, 15, v2
                  v_cmp_ne_u32 vcc, 0, v2
                  s_and_b64 exec, exec, vcc
                  s_cbranch_execz L_f2x""")
            if gap2: A(f"s_sleep {gap2}")
            lds2(k)
        A(f"s_sub_u32 s{sSPIN}, s{sSPIN}, 1\ns_cbranch_scc0 L_f2\nL_f2x:")
    A("s_mov_b64 exec, -1")
    stamp(12)
    red4()
    A(f"""v_cvt_pk_bf16_f32 v8, 0, v8
          v_mul_f32 v8, v8, v90
          v_cvt_pk_bf16_f32 v8, 0, v8
          v_add_f32 v8, v8, v91
          v_cvt_pk_bf16_f32 v8, v8, v8
          s_mov_b32 exec_lo, 0x000f000f
          s_mov_b32 exec_hi, 0x000f000f
          buffer_store_short v8, v93, {srd(SOUT)}, 0 offen
          s_cmp_lg_u32 s{sLID}, 0
          s_cbranch_scc1 L_fin
          s_mov_b64 exec, 3
          v_mov_b32 v40, s{sTAG}
          v_mov_b32 v41, s{sTAG}
          v_mov_b32 v42, s{sTAG}
          v_mov_b32 v43, s{sTAG}
          buffer_store_dwordx4 v[40:43], v96, {srd(SWS)}, 0 offen""")
    A("L_fin:")
    if diag is not None:
        A("s_waitcnt vmcnt(0)")
        stamp(13)
        if diag == 99: A(f"s_xor_b32 s{sT0}, s{sST+15}, 1\ns_mul_i32 s{sT0}, s{sT0}, 2000\ns_xor_b32 s{sT1}, s{sFAST}, 1\ns_mul_i32 s{sT1}, s{sT1}, 4000\ns_add_u32 s{sT0}, s{sT0}, s{sT1}\ns_add_u32 s{sT0}, s{sT0}, 12000")
        else: A(f"s_sub_u32 s{sT0}, s{sST+diag}, s{sST}\ns_mul_i32 s{sT0}, s{sT0}, {mult}\ns_add_u32 s{sT0}, s{sT0}, 12000\ns_min_u32 s{sT0}, s{sT0}, 100000")
        A(f"L_diag:\ns_memrealtime s[100:101]\ns_waitcnt lgkmcnt(0)\ns_sub_u32 s{sT1}, s100, s{sST}\ns_cmp_lt_u32 s{sT1}, s{sT0}\ns_cbranch_scc1 L_diag")
    if wr:
        A("s_waitcnt vmcnt(0)")
        stamp(13, True)
        A(f"s_lshl_b32 s{sT0}, s2, 8\ns_add_u32 s{sT0}, s{sT0}, {STAMP_OFF}")
        A("L_wrstamps:\ns_sleep 127\ns_sleep 127\ns_sleep 127\ns_mov_b64 exec, 1\nv_mov_b32 v2, 0\nv_mov_b32 v5, 0")
        for i in range(16):
            A(f"v_mov_b32 v4, s{sST+i}\nbuffer_store_dwordx2 v[4:5], v2, {srd(SWS)}, s{sT0} offen offset:{8*i}\ns_waitcnt vmcnt(0)")
    A("L_end:\ns_endpgm\nL_codeend:")
    nv = max(220, vSPARE + 12 * NX)
    A('.section .rodata,"a"\n.p2align 6')
    A(f".amdhsa_kernel {NAME}_kernel")
    A(f".amdhsa_next_free_vgpr {nv}\n.amdhsa_next_free_sgpr 102\n.amdhsa_accum_offset {(nv+3)//4*4}")
    A(".amdhsa_group_segment_fixed_size 0\n.amdhsa_kernarg_size 88\n.amdhsa_user_sgpr_count 2")
    A(".amdhsa_user_sgpr_kernarg_segment_ptr 1\n.amdhsa_system_sgpr_workgroup_id_x 1\n.amdhsa_float_denorm_mode_32 3")
    A(".end_amdhsa_kernel")
    L = A.L
    def drop(f): return [("    s_nop 0" if f(x) else x) for x in L]
    if abl & 1: L = drop(lambda x: "buffer_store_dwordx4 v[40:43], v94" in x)
    if abl & 2: L = drop(lambda x: "buffer_store_dword v2" in x and ", v66," in x and "offset" not in x)
    if abl & 4: L = drop(lambda x: "buffer_store_dword v" in x and ", v66," in x and "offset" in x)
    if abl & 8: L = drop(lambda x: ("buffer_load_dwordx4" in x and ", v94," in x and "offset" in x) or "buffer_load_dword v98, v2" in x)
    if abl & 16: L = drop(lambda x: "buffer_load_dwordx4 v[1" in x and ", v94," in x and "offset" not in x)
    if abl & 32: L = drop(lambda x: "buffer_store_dwordx4 v[40:43], v88" in x or "buffer_load_dwordx4 v[44:47], v94" in x)
    if abl & 64: L = drop(lambda x: "buffer_store_dwordx2 v[56:57]" in x)
    if abl & 128: L = drop(lambda x: "buffer_store_dword v57" in x)
    if abl & 256: L = drop(lambda x: "s[52:55]" in x and "buffer_load" in x)
    if now: L = [("    s_nop 0" if (" lds" in x and "buffer_load" in x) else x) for x in L]
    return "\n".join(L) + "\n"

if __name__ == "__main__":
    for sp in sys.argv[1:]:
        kw = {}
        for kv in sp.split(","):
            k, v = kv.split("=")
            kw[k] = int(v)
        fn = "k_g5" + sp.replace(",", "_").replace("=", "") + ".s"
        open(fn, "w").write(gen(**kw))
        print(fn)
```
